```python
import torch

def _softmax(x, axis=-1):
    return torch.softmax(x, dim=axis)
def _gelu(x):
    return torch.nn.functional.gelu(x, approximate="tanh")
def _silu(x):
    return torch.nn.functional.silu(x)
def _sigmoid(x):
    return torch.sigmoid(x)
def _layernorm(x, axis=-1, eps=1e-5):
    m = x.mean(dim=axis, keepdim=True)
    v = x.var(dim=axis, keepdim=True, unbiased=False)
    return (x - m) / torch.sqrt(v + eps)
def _scatter_add(tgt, idx, src, axis=0):
    return tgt.clone().index_add_(axis, idx, src)
def _segment_sum(src, seg, n):
    out = torch.zeros((n,) + src.shape[1:], dtype=src.dtype)
    return out.index_add_(0, seg, src)
def _pad(x, pw):
    flat = tuple(v for pair in reversed(pw) for v in pair)
    return torch.nn.functional.pad(x, flat)

kernel_name = 'standalone__gqa_block_cached__near_ridge'

def setup_inputs():

    _w = (lambda a: (lambda t: t.to(torch.bfloat16) if t.is_floating_point() else t)(torch.as_tensor(a)))
    B, Sq, D = 8, 128, 512
    Hq, Hkv, Sk, Dh = 32, 32, 2048, 128
    assert Hq % Hkv == 0, (Hq, Hkv)
    return {
        "x": _w((lambda *s: torch.randn(*s, dtype=torch.bfloat16) * 0.8)(B, Sq, D)),
        "k_cache": _w((lambda *s: torch.randn(*s, dtype=torch.bfloat16) * 0.8)(B, Hkv, Sk, Dh)),
        "v_cache": _w((lambda *s: torch.randn(*s, dtype=torch.bfloat16) * 0.05)(B, Hkv, Sk, Dh)),
        "wq": _w((lambda *s: torch.randn(*s, dtype=torch.bfloat16) * 0.8)(D, Hq * Dh) * (D ** -0.5)),
        "wo": _w((lambda *s: torch.randn(*s, dtype=torch.bfloat16) * 0.05)(Hq * Dh, D) * ((Hq * Dh) ** -0.5)),
    }

def reference(x, k_cache, v_cache, wq, wo):
    B, Sq, D = x.shape
    Hq, Dh = 32, 128
    Hkv = k_cache.shape[1]
    rep = Hq // Hkv
    q = (lambda x, *d: x.permute(*d))((x @ wq).reshape(B, Sq, Hq, Dh), 0, 2, 1, 3)
    k = (lambda x, n, axis: torch.repeat_interleave(x, n, dim=axis))(k_cache, rep, axis=1)
    v = (lambda x, n, axis: torch.repeat_interleave(x, n, dim=axis))(v_cache, rep, axis=1)
    scores = torch.einsum("bhqd,bhkd->bhqk", q, k) * (Dh ** -0.5)
    p = _softmax(scores, axis=-1)
    o = torch.einsum("bhqk,bhkd->bhqd", p, v)
    return (lambda x, *d: x.permute(*d))(o, 0, 2, 1, 3).reshape(B, Sq, Hq * Dh) @ wo
```

```python
import math
L=[]
def e(s): L.append(s)
def vr(a,n): return f"v[{a}:{a+n-1}]"
HDR='''; @launch kernel=attn_kernel grid=(256,1,1) block=(512,1,1) lds=163840
; @launch kernel=oproj_kernel grid=(256,1,1) block=(256,1,1) lds=131072
.amdgcn_target "amdgcn-amd-amdhsa--gfx950"
.text
'''
def srd(d,p,n):
    e(f"s_mov_b32 s{d}, s{p}"); e(f"s_mov_b32 s{d+1}, s{p+1}")
    e(f"s_mov_b32 s{d+2}, {n}"); e(f"s_mov_b32 s{d+3}, 0x00020000")
def desc(name,nv):
    return f'''.section .rodata,"a"
.p2align 6
.amdhsa_kernel {name}
  .amdhsa_next_free_vgpr {nv}
  .amdhsa_next_free_sgpr 102
  .amdhsa_accum_offset {min(256,(nv+3)//4*4)}
  .amdhsa_group_segment_fixed_size 0
  .amdhsa_kernarg_size 64
  .amdhsa_user_sgpr_count 2
  .amdhsa_user_sgpr_kernarg_segment_ptr 1
  .amdhsa_system_sgpr_workgroup_id_x 1
.end_amdhsa_kernel
.text
'''
QF,OA,SA,KF,VF,PP=16,48,112,128,160,192
e(".globl attn_kernel\n.p2align 8\n.type attn_kernel,@function\nattn_kernel:")
e("s_cmp_ge_u32 s2, 256"); e("s_cbranch_scc1 A_end")
e("s_load_dwordx8 s[4:11], s[0:1], 0")
e("s_load_dwordx2 s[12:13], s[0:1], 56")
e("s_waitcnt lgkmcnt(0)")
srd(16,4,1048576); srd(20,6,134217728); srd(24,8,134217728); srd(28,10,4194304); srd(32,12,8388608)
e("v_and_b32 v1, 63, v0")
e("v_lshrrev_b32 v2, 6, v0")
e("s_nop 0"); e("v_readfirstlane_b32 s40, v2")
e("s_nop 3")
e("s_lshr_b32 s41, s40, 2")
e("s_and_b32 s42, s40, 3")
e("s_lshl_b32 s43, s2, 19")
e("s_lshr_b32 s44, s2, 5")
e("s_and_b32 s45, s2, 31")
e("v_lshrrev_b32 v3, 4, v1")
e("v_and_b32 v4, 15, v1")
e("s_lshl_b32 s46, s40, 2")
e("v_add_u32 v5, s46, v3")
e("v_and_b32 v6, 15, v5"); e("v_xor_b32 v6, v6, v4")
e("v_lshlrev_b32 v7, 8, v5"); e("v_lshl_add_u32 v200, v6, 4, v7")
e("v_lshlrev_b32 v6, 2, v3"); e("v_xor_b32 v6, v6, v4")
e("v_lshl_add_u32 v201, v6, 4, v7")
e("v_lshlrev_b32 v7, 13, v5"); e("v_lshl_add_u32 v202, v6, 4, v7")
e("s_lshl_b32 s47, s40, 10")
def dma_unit(sunit_off, slot_s):
    for part,(sr,vo) in enumerate(((20,200),(24,201))):
        for i in range(2):
            e(f"s_add_u32 s50, {slot_s}, s47")
            e(f"s_add_u32 s50, s50, {part*16384+i*8192}")
            e(f"s_add_u32 s51, {sunit_off}, {i*8192}")
            e("s_mov_b32 m0, s50"); e("s_nop 0")
            e(f"buffer_load_dwordx4 v{vo}, s[{sr}:{sr+3}], s51 offen lds")
for u in range(3):
    e(f"s_add_u32 s52, s43, {u*16384}"); e(f"s_mov_b32 s53, {u*32768}")
    dma_unit("s52","s53")
e("v_and_b32 v8, 31, v1"); e("v_lshrrev_b32 v9, 5, v1")
e("s_lshl_b32 s54, s44, 7"); e("s_lshl_b32 s55, s42, 5"); e("s_add_u32 s54, s54, s55")
e("v_add_u32 v10, s54, v8"); e("v_lshlrev_b32 v10, 10, v10"); e("v_lshl_add_u32 v203, v9, 4, v10")
e("v_and_b32 v11, 3, v1")
e("v_bfe_u32 v12, v1, 2, 2")
e("v_bfe_u32 v13, v1, 4, 1")
e("v_and_b32 v14, 1, v11"); e("v_lshrrev_b32 v15, 1, v11")
e("v_lshl_add_u32 v204, v13, 1, v14"); e("v_lshlrev_b32 v205, 2, v12"); e("v_xor_b32 v204, v204, v205")
e("v_lshlrev_b32 v204, 4, v204"); e("v_lshl_add_u32 v204, v15, 3, v204")
e("v_lshl_add_u32 v205, v9, 3, v12"); e("v_lshl_add_u32 v204, v205, 8, v204")
e("s_lshl_b32 s55, s41, 7")
e("v_xor_b32 v204, s55, v204")
e("v_add_u32 v204, 0x18000, v204")
e("v_xor_b32 v205, 64, v204")
e("v_lshl_add_u32 v206, v13, 1, v15"); e("v_lshlrev_b32 v207, 2, v12"); e("v_xor_b32 v206, v206, v207")
e("v_lshlrev_b32 v206, 4, v206"); e("v_lshl_add_u32 v206, v14, 3, v206")
e("v_lshl_add_u32 v207, v9, 2, v12"); e("s_lshl_b32 s55, s41, 5"); e("v_add_u32 v207, s55, v207")
e("v_lshl_add_u32 v206, v207, 8, v206"); e("v_add_u32 v206, 16384, v206")
e("v_add_u32 v207, s55, v8"); e("v_and_b32 v208, 15, v207"); e("v_xor_b32 v208, v208, v9")
e("v_lshlrev_b32 v208, 4, v208"); e("v_lshl_add_u32 v207, v207, 8, v208")
AC=208
for i in range(32): e(f"v_mov_b32 v{AC+i}, 0")
for half in range(2):
    if half: e("s_barrier")
    for i in range(8):
        e(f"s_add_u32 s50, s47, {0x18000+i*8192}")
        e(f"s_lshl_b32 s51, s45, 8"); e(f"s_add_u32 s51, s51, {(half*256+i*32)*8192}")
        e("s_mov_b32 m0, s50"); e("s_nop 0")
        e("buffer_load_dwordx4 v202, s[28:31], s51 offen lds")
    for s in range(16):
        e(f"buffer_load_dwordx4 {vr(OA+4*s,4)}, v203, s[16:19], 0 offen offset:{half*512+s*32}")
    e("s_waitcnt vmcnt(0)"); e("s_barrier")
    for s in range(16):
        for d,ar in enumerate((204,205)):
            f=KF+((s*2+d)%8)*4
            e(f"ds_read_b64_tr_b16 {vr(f,2)}, v{ar} offset:{s*4096}")
            e(f"ds_read_b64_tr_b16 {vr(f+2,2)}, v{ar} offset:{s*4096+1024}")
            e("s_waitcnt lgkmcnt(0)")
            e(f"v_mfma_f32_32x32x16_bf16 {vr(AC+16*d,16)}, {vr(f,4)}, {vr(OA+4*s,4)}, {vr(AC+16*d,16)}")
e("s_nop 15"); e("s_barrier")
for i in range(16): e(f"v_cvt_pk_bf16_f32 v{KF+i}, v{AC+2*i}, v{AC+2*i+1}")
e("v_lshlrev_b32 v10, 6, v0"); e("v_add_u32 v10, 0x18000, v10")
e("v_xor_b32 v11, 0x4000, v10")
for i in range(4): e(f"ds_write_b128 v10, {vr(KF+4*i,4)} offset:{16*i}")
e("s_waitcnt lgkmcnt(0)"); e("s_barrier")
for i in range(4): e(f"ds_read_b128 {vr(VF+4*i,4)}, v11 offset:{16*i}")
e("s_waitcnt lgkmcnt(0)")
e("s_cmp_eq_u32 s41, 0"); e("s_cbranch_scc0 A_g1")
for i in range(16): e(f"v_mov_b32 v{QF+i}, v{KF+i}"); e(f"v_mov_b32 v{QF+16+i}, v{VF+i}")
e("s_branch A_q"); e("A_g1:")
for i in range(16): e(f"v_mov_b32 v{QF+16+i}, v{KF+i}"); e(f"v_mov_b32 v{QF+i}, v{VF+i}")
e("A_q:")
e("s_barrier")
for i in range(64): e(f"v_mov_b32 v{OA+i}, 0")
e("v_mov_b32 v212, 0xff800000")
e("v_mov_b32 v213, 0")
c=math.log2(math.e)/math.sqrt(128)
import struct
cb=struct.unpack('<I',struct.pack('<f',c))[0]
e(f"s_mov_b32 s60, 0x{cb:08x}")
e("s_mov_b32 s61, 0")
e("A_loop:")
e("s_cmp_ge_u32 s61, 29"); e("s_cbranch_scc1 A_w0")
e("s_waitcnt vmcnt(8)"); e("s_branch A_w1")
e("A_w0:"); e("s_waitcnt vmcnt(0)"); e("A_w1:")
e("s_barrier")
e("s_cmp_ge_u32 s61, 29"); e("s_cbranch_scc1 A_nodma")
e("s_add_u32 s52, s61, 3"); e("s_and_b32 s53, s52, 3"); e("s_lshl_b32 s53, s53, 15")
e("s_lshl_b32 s52, s52, 14"); e("s_add_u32 s52, s52, s43")
dma_unit("s52","s53")
e("A_nodma:")
e("s_and_b32 s53, s61, 3"); e("s_lshl_b32 s53, s53, 15")
e("v_add_u32 v10, s53, v207"); e("v_add_u32 v11, s53, v206")
for s in range(8):
    e(f"v_xor_b32 v12, {s*32}, v10")
    e(f"ds_read_b128 {vr(KF+4*s,4)}, v12")
for d in range(4):
    e(f"v_xor_b32 v{216+d}, {d*64}, v11")
for s in range(8):
    e(f"s_waitcnt lgkmcnt({7-s})")
    src = "0" if s==0 else vr(SA,16)
    e(f"v_mfma_f32_32x32x16_bf16 {vr(SA,16)}, {vr(KF+4*s,4)}, {vr(QF+4*s,4)}, {src}")
for d in range(4):
    for ks in range(2):
        f=VF+(d*2+ks)*4
        e(f"ds_read_b64_tr_b16 {vr(f,2)}, v{216+d} offset:{ks*4096}")
        e(f"ds_read_b64_tr_b16 {vr(f+2,2)}, v{216+d} offset:{ks*4096+2048}")
e("s_nop 7")
e(f"v_max3_f32 v14, v{SA}, v{SA+1}, v212")
for i in range(2,16,2): e(f"v_max3_f32 v14, v{SA+i}, v{SA+i+1}, v14")
e("v_mov_b32 v15, v14"); e("s_nop 1")
e("v_permlane32_swap_b32 v14, v15"); e("s_nop 1")
e("v_max_f32 v14, v14, v15")
e("v_sub_f32 v15, v212, v14"); e("v_mul_f32 v15, s60, v15"); e("v_exp_f32 v15, v15")
e("v_mov_b32 v212, v14")
e("v_mul_f32 v14, s60, v14")
for i in range(16):
    e(f"v_fma_f32 v{SA+i}, v{SA+i}, s60, -v14")
for i in range(16): e(f"v_exp_f32 v{SA+i}, v{SA+i}")
e("v_mul_f32 v213, v213, v15")
for i in range(16): e(f"v_add_f32 v213, v213, v{SA+i}")
for i in range(8): e(f"v_cvt_pk_bf16_f32 v{PP+i}, v{SA+2*i}, v{SA+2*i+1}")
for i in range(64): e(f"v_mul_f32 v{OA+i}, v{OA+i}, v15")
e("s_waitcnt lgkmcnt(0)"); e("s_nop 1")
for d in range(4):
    for ks in range(2):
        f=VF+(d*2+ks)*4
        e(f"v_mfma_f32_32x32x16_bf16 {vr(OA+16*d,16)}, {vr(f,4)}, {vr(PP+4*ks,4)}, {vr(OA+16*d,16)}")
e("s_add_u32 s61, s61, 1"); e("s_cmp_lt_u32 s61, 32"); e("s_cbranch_scc1 A_loop")
e("s_nop 15")
e("v_mov_b32 v15, v213"); e("s_nop 1"); e("v_permlane32_swap_b32 v213, v15"); e("s_nop 1")
e("v_add_f32 v213, v213, v15")
e("s_barrier")
e("v_lshlrev_b32 v10, 4, v1"); e("s_lshl_b32 s50, s40, 13"); e("v_add_u32 v10, s50, v10")
e("v_xor_b32 v11, 0x8000, v10")
e("v_lshlrev_b32 v12, 3, v0"); e("v_add_u32 v12, 0x10000, v12"); e("v_xor_b32 v13, 0x800, v12")
e("ds_write_b64 v12, v[212:213]")
e("s_cmp_eq_u32 s41, 0"); e("s_cbranch_scc0 A_e1")
for i in range(8): e(f"ds_write_b128 v10, {vr(OA+32+4*i,4)} offset:{1024*i}")
e("s_branch A_e2"); e("A_e1:")
for i in range(8): e(f"ds_write_b128 v10, {vr(OA+4*i,4)} offset:{1024*i}")
for i in range(32): e(f"v_mov_b32 v{OA+i}, v{OA+32+i}")
e("A_e2:")
e("s_waitcnt lgkmcnt(0)"); e("s_barrier")
e("ds_read_b64 v[214:215], v13")
for i in range(8): e(f"ds_read_b128 {vr(KF+4*i,4)}, v11 offset:{1024*i}")
e("s_waitcnt lgkmcnt(0)")
e("v_max_f32 v14, v212, v214")
e("v_sub_f32 v212, v212, v14"); e("v_sub_f32 v214, v214, v14")
e("v_mul_f32 v212, s60, v212"); e("v_mul_f32 v214, s60, v214")
e("v_exp_f32 v212, v212"); e("v_exp_f32 v214, v214"); e("s_nop 0")
e("v_mul_f32 v14, v212, v213"); e("v_fma_f32 v14, v214, v215, v14")
e("v_rcp_f32 v14, v14"); e("s_nop 0")
e("v_mul_f32 v212, v212, v14"); e("v_mul_f32 v214, v214, v14")
for i in range(32):
    e(f"v_mul_f32 v{OA+i}, v{OA+i}, v212"); e(f"v_fma_f32 v{OA+i}, v{KF+i}, v214, v{OA+i}")
for i in range(16): e(f"v_cvt_pk_bf16_f32 v{SA+i}, v{OA+2*i}, v{OA+2*i+1}")
e("s_lshl_b32 s54, s44, 7"); e("s_lshl_b32 s55, s42, 5"); e("s_add_u32 s54, s54, s55")
e("v_add_u32 v10, s54, v8"); e("v_lshlrev_b32 v10, 13, v10"); e("v_lshl_add_u32 v10, v9, 3, v10")
e("s_lshl_b32 s54, s45, 8"); e("s_lshl_b32 s55, s41, 7"); e("s_add_u32 s54, s54, s55")
for i in range(8):
    e(f"buffer_store_dwordx2 {vr(SA+2*i,2)}, v10, s[32:35], s54 offen offset:{(i//4)*64+(i%4)*16}")
e("A_end:"); e("s_endpgm")
L.append(desc("attn_kernel",256))

e(".globl oproj_kernel\n.p2align 8\n.type oproj_kernel,@function\noproj_kernel:")
e("s_cmp_ge_u32 s2, 256"); e("s_cbranch_scc1 B_end")
e("s_load_dwordx4 s[4:7], s[0:1], 32")
e("s_load_dwordx2 s[12:13], s[0:1], 56")
e("s_waitcnt lgkmcnt(0)")
srd(16,4,4194304); srd(20,6,1048576); srd(24,12,8388608)
e("v_and_b32 v1, 63, v0"); e("v_lshrrev_b32 v2, 6, v0"); e("s_nop 0")
e("v_readfirstlane_b32 s40, v2"); e("s_nop 3")
e("s_and_b32 s41, s2, 15")
e("s_lshr_b32 s42, s2, 4")
e("v_lshrrev_b32 v3, 2, v1"); e("v_and_b32 v4, 3, v1"); e("v_lshlrev_b32 v3, 10, v3"); e("v_lshl_add_u32 v200, v4, 4, v3")
e("s_lshl_b32 s43, s40, 20"); e("s_lshl_b32 s44, s41, 6"); e("s_add_u32 s43, s43, s44")
e("s_lshl_b32 s45, s40, 15")
e("v_and_b32 v8, 31, v1"); e("v_lshrrev_b32 v9, 5, v1"); e("s_lshl_b32 s46, s42, 6")
e("v_add_u32 v10, s46, v8"); e("v_lshlrev_b32 v10, 13, v10"); e("v_lshl_add_u32 v10, v9, 4, v10")
e("s_lshl_b32 s46, s40, 11"); e("v_add_u32 v201, s46, v10"); e("v_add_u32 v202, 0x40000, v201")
e("v_and_b32 v11, 3, v1"); e("v_bfe_u32 v12, v1, 2, 2"); e("v_bfe_u32 v13, v1, 4, 1")
e("v_lshl_add_u32 v12, v9, 3, v12"); e("v_lshlrev_b32 v12, 6, v12"); e("v_lshl_add_u32 v12, v13, 5, v12")
e("v_lshl_add_u32 v12, v11, 3, v12"); e("v_add_u32 v203, s45, v12")
for i in range(32): e(f"v_mov_b32 v{160+i}, 0")
def wodma(r):
    for i in range(16):
        e(f"s_add_u32 s50, s45, {(r%2)*16384+i*1024}"); e(f"s_add_u32 s51, s43, {(r*256+i*16)*1024}")
        e("s_mov_b32 m0, s50"); e("s_nop 0")
        e("buffer_load_dwordx4 v200, s[16:19], s51 offen lds")
wodma(0)
for r in range(4):
    for s in range(16):
        e(f"buffer_load_dwordx4 {vr(16+8*s,4)}, v201, s[24:27], 0 offen offset:{r*512+s*32}")
        e(f"buffer_load_dwordx4 {vr(20+8*s,4)}, v202, s[24:27], 0 offen offset:{r*512+s*32}")
    if r<3:
        wodma(r+1); e("s_waitcnt vmcnt(16)")
    else: e("s_waitcnt vmcnt(0)")
    for s in range(16):
        f=144+(s%2)*4
        e(f"ds_read_b64_tr_b16 {vr(f,2)}, v203 offset:{(r%2)*16384+s*1024}")
        e(f"ds_read_b64_tr_b16 {vr(f+2,2)}, v203 offset:{(r%2)*16384+s*1024+256}")
        e("s_waitcnt lgkmcnt(0)")
        e(f"v_mfma_f32_32x32x16_bf16 v[160:175], {vr(f,4)}, {vr(16+8*s,4)}, v[160:175]")
        e(f"v_mfma_f32_32x32x16_bf16 v[176:191], {vr(f,4)}, {vr(20+8*s,4)}, v[176:191]")
e("s_nop 15"); e("s_barrier")
e("v_lshlrev_b32 v10, 4, v1"); e("s_lshl_b32 s50, s40, 13"); e("v_add_u32 v10, s50, v10")
for i in range(8): e(f"ds_write_b128 v10, {vr(160+4*i,4)} offset:{1024*i}")
e("s_waitcnt lgkmcnt(0)"); e("s_barrier")
e("v_lshlrev_b32 v10, 4, v1"); e("s_lshl_b32 s50, s40, 11"); e("v_add_u32 v10, s50, v10")
for w in range(4):
    for i in range(2): e(f"ds_read_b128 {vr(16+8*w+4*i,4)}, v10 offset:{w*8192+i*1024}")
e("s_waitcnt lgkmcnt(0)")
for w in range(1,4):
    for i in range(8): e(f"v_add_f32 v{16+i}, v{16+i}, v{16+8*w+i}")
for i in range(4): e(f"v_cvt_pk_bf16_f32 v{60+i}, v{16+2*i}, v{17+2*i}")
e("s_lshr_b32 s50, s40, 1"); e("s_lshl_b32 s50, s50, 5"); e("s_lshl_b32 s51, s42, 6"); e("s_add_u32 s50, s50, s51")
e("v_add_u32 v10, s50, v8"); e("v_lshlrev_b32 v10, 10, v10"); e("v_lshl_add_u32 v10, v9, 3, v10")
e("s_and_b32 s50, s40, 1"); e("s_lshl_b32 s50, s50, 5"); e("s_lshl_b32 s51, s41, 6"); e("s_add_u32 s50, s50, s51")
e("buffer_store_dwordx2 v[60:61], v10, s[20:23], s50 offen")
e("buffer_store_dwordx2 v[62:63], v10, s[20:23], s50 offen offset:16")
e("B_end:"); e("s_endpgm")
L.append(desc("oproj_kernel",256))
open("standalone__gqa_block_cached__near_ridge.s","w").write(HDR+"\n".join(L)+"\n")
```

```python
import math
L=[]
def e(s): L.append(s)
def vr(a,n): return f"v[{a}:{a+n-1}]"
HDR='''; @launch kernel=attn_kernel grid=(256,1,1) block=(512,1,1) lds=163840
; @launch kernel=oproj_kernel grid=(256,1,1) block=(256,1,1) lds=131072
.amdgcn_target "amdgcn-amd-amdhsa--gfx950"
.text
'''
def srd(d,p,n):
    e(f"s_mov_b32 s{d}, s{p}"); e(f"s_mov_b32 s{d+1}, s{p+1}")
    e(f"s_mov_b32 s{d+2}, {n}"); e(f"s_mov_b32 s{d+3}, 0x00020000")
def desc(name,nv):
    return f'''.section .rodata,"a"
.p2align 6
.amdhsa_kernel {name}
  .amdhsa_next_free_vgpr {nv}
  .amdhsa_next_free_sgpr 102
  .amdhsa_accum_offset {min(256,(nv+3)//4*4)}
  .amdhsa_group_segment_fixed_size 0
  .amdhsa_kernarg_size 64
  .amdhsa_user_sgpr_count 2
  .amdhsa_user_sgpr_kernarg_segment_ptr 1
  .amdhsa_system_sgpr_workgroup_id_x 1
.end_amdhsa_kernel
.text
'''
QF,OA,SA,KF,VF,PP=16,48,112,128,160,192
e(".globl attn_kernel\n.p2align 8\n.type attn_kernel,@function\nattn_kernel:")
e("s_cmp_ge_u32 s2, 256"); e("s_cbranch_scc1 A_end")
e("s_load_dwordx8 s[4:11], s[0:1], 0")
e("s_load_dwordx2 s[12:13], s[0:1], 56")
e("s_waitcnt lgkmcnt(0)")
srd(16,4,1048576); srd(20,6,134217728); srd(24,8,134217728); srd(28,10,4194304); srd(32,12,8388608)
e("v_and_b32 v1, 63, v0")
e("v_lshrrev_b32 v2, 6, v0")
e("s_nop 0"); e("v_readfirstlane_b32 s40, v2")
e("s_nop 3")
e("s_lshr_b32 s41, s40, 2")
e("s_and_b32 s42, s40, 3")
e("s_lshl_b32 s43, s2, 19")
e("s_lshr_b32 s44, s2, 5")
e("s_and_b32 s45, s2, 31")
e("v_lshrrev_b32 v3, 4, v1")
e("v_and_b32 v4, 15, v1")
e("s_lshl_b32 s46, s40, 2")
e("v_add_u32 v5, s46, v3")
e("v_and_b32 v6, 15, v5"); e("v_xor_b32 v6, v6, v4")
e("v_lshlrev_b32 v7, 8, v5"); e("v_lshl_add_u32 v200, v6, 4, v7")
e("v_lshlrev_b32 v6, 2, v3"); e("v_xor_b32 v6, v6, v4")
e("v_lshl_add_u32 v201, v6, 4, v7")
e("v_lshlrev_b32 v7, 13, v5"); e("v_lshl_add_u32 v202, v6, 4, v7")
e("s_lshl_b32 s47, s40, 10")
def dma_unit(sunit_off, slot_s):
    for part,(sr,vo) in enumerate(((20,200),(24,201))):
        for i in range(2):
            e(f"s_add_u32 s50, {slot_s}, s47")
            e(f"s_add_u32 s50, s50, {part*16384+i*8192}")
            e(f"s_add_u32 s51, {sunit_off}, {i*8192}")
            e("s_mov_b32 m0, s50"); e("s_nop 0")
            e(f"buffer_load_dwordx4 v{vo}, s[{sr}:{sr+3}], s51 offen lds")
for u in range(3):
    e(f"s_add_u32 s52, s43, {u*16384}"); e(f"s_mov_b32 s53, {u*32768}")
    dma_unit("s52","s53")
e("v_and_b32 v8, 31, v1"); e("v_lshrrev_b32 v9, 5, v1")
e("s_lshl_b32 s54, s44, 7"); e("s_lshl_b32 s55, s42, 5"); e("s_add_u32 s54, s54, s55")
e("v_add_u32 v10, s54, v8"); e("v_lshlrev_b32 v10, 10, v10"); e("v_lshl_add_u32 v203, v9, 4, v10")
e("v_and_b32 v11, 3, v1")
e("v_bfe_u32 v12, v1, 2, 2")
e("v_bfe_u32 v13, v1, 4, 1")
e("v_and_b32 v14, 1, v11"); e("v_lshrrev_b32 v15, 1, v11")
e("v_lshl_add_u32 v204, v13, 1, v14"); e("v_lshlrev_b32 v205, 2, v12"); e("v_xor_b32 v204, v204, v205")
e("v_lshlrev_b32 v204, 4, v204"); e("v_lshl_add_u32 v204, v15, 3, v204")
e("v_lshl_add_u32 v205, v9, 3, v12"); e("v_lshl_add_u32 v204, v205, 8, v204")
e("s_lshl_b32 s55, s41, 7")
e("v_xor_b32 v204, s55, v204")
e("v_add_u32 v204, 0x18000, v204")
e("v_xor_b32 v205, 64, v204")
e("v_lshl_add_u32 v206, v13, 1, v15"); e("v_lshlrev_b32 v207, 2, v12"); e("v_xor_b32 v206, v206, v207")
e("v_lshlrev_b32 v206, 4, v206"); e("v_lshl_add_u32 v206, v14, 3, v206")
e("v_lshl_add_u32 v207, v9, 2, v12"); e("s_lshl_b32 s55, s41, 5"); e("v_add_u32 v207, s55, v207")
e("v_lshl_add_u32 v206, v207, 8, v206"); e("v_add_u32 v206, 16384, v206")
e("v_add_u32 v207, s55, v8"); e("v_and_b32 v208, 15, v207"); e("v_xor_b32 v208, v208, v9")
e("v_lshlrev_b32 v208, 4, v208"); e("v_lshl_add_u32 v207, v207, 8, v208")
AC=208
for i in range(32): e(f"v_mov_b32 v{AC+i}, 0")
for half in range(2):
    if half: e("s_barrier")
    for i in range(8):
        e(f"s_add_u32 s50, s47, {0x18000+i*8192}")
        e(f"s_lshl_b32 s51, s45, 8"); e(f"s_add_u32 s51, s51, {(half*256+i*32)*8192}")
        e("s_mov_b32 m0, s50"); e("s_nop 0")
        e("buffer_load_dwordx4 v202, s[28:31], s51 offen lds")
    for s in range(16):
        e(f"buffer_load_dwordx4 {vr(OA+4*s,4)}, v203, s[16:19], 0 offen offset:{half*512+s*32}")
    e("s_waitcnt vmcnt(0)"); e("s_barrier")
    for s in range(16):
        for d,ar in enumerate((204,205)):
            f=KF+((s*2+d)%8)*4
            def rd(n):
                ss,dd=n//2,n%2; ff=KF+(n%8)*4
                e(f"ds_read_b64_tr_b16 {vr(ff,2)}, v{204+dd} offset:{ss*4096}")
                e(f"ds_read_b64_tr_b16 {vr(ff+2,2)}, v{204+dd} offset:{ss*4096+1024}")
            n=s*2+d
            if n==0:
                for k in range(4): rd(k)
            if n+4<32: rd(n+4)
            e(f"s_waitcnt lgkmcnt({min(8,2*(31-n))})")
            e(f"v_mfma_f32_32x32x16_bf16 {vr(AC+16*d,16)}, {vr(f,4)}, {vr(OA+4*s,4)}, {vr(AC+16*d,16)}")
e("s_nop 15"); e("s_barrier")
for i in range(16): e(f"v_cvt_pk_bf16_f32 v{KF+i}, v{AC+2*i}, v{AC+2*i+1}")
e("v_lshlrev_b32 v10, 6, v0"); e("v_add_u32 v10, 0x18000, v10")
e("v_xor_b32 v11, 0x4000, v10")
for i in range(4): e(f"ds_write_b128 v10, {vr(KF+4*i,4)} offset:{16*i}")
e("s_waitcnt lgkmcnt(0)"); e("s_barrier")
for i in range(4): e(f"ds_read_b128 {vr(VF+4*i,4)}, v11 offset:{16*i}")
e("s_waitcnt lgkmcnt(0)")
e("s_cmp_eq_u32 s41, 0"); e("s_cbranch_scc0 A_g1")
for i in range(16): e(f"v_mov_b32 v{QF+i}, v{KF+i}"); e(f"v_mov_b32 v{QF+16+i}, v{VF+i}")
e("s_branch A_q"); e("A_g1:")
for i in range(16): e(f"v_mov_b32 v{QF+16+i}, v{KF+i}"); e(f"v_mov_b32 v{QF+i}, v{VF+i}")
e("A_q:")
e("s_barrier")
for i in range(64): e(f"v_mov_b32 v{OA+i}, 0")
e("v_mov_b32 v212, 0xff800000")
e("v_mov_b32 v213, 0")
c=math.log2(math.e)/math.sqrt(128)
import struct
cb=struct.unpack('<I',struct.pack('<f',c))[0]
e(f"s_mov_b32 s60, 0x{cb:08x}")
e("s_mov_b32 s61, 0")
e("A_loop:")
e("s_cmp_ge_u32 s61, 29"); e("s_cbranch_scc1 A_w0")
e("s_waitcnt vmcnt(8)"); e("s_branch A_w1")
e("A_w0:"); e("s_waitcnt vmcnt(0)"); e("A_w1:")
e("s_barrier")
e("s_cmp_ge_u32 s61, 29"); e("s_cbranch_scc1 A_nodma")
e("s_add_u32 s52, s61, 3"); e("s_and_b32 s53, s52, 3"); e("s_lshl_b32 s53, s53, 15")
e("s_lshl_b32 s52, s52, 14"); e("s_add_u32 s52, s52, s43")
dma_unit("s52","s53")
e("A_nodma:")
e("s_and_b32 s53, s61, 3"); e("s_lshl_b32 s53, s53, 15")
e("v_add_u32 v10, s53, v207"); e("v_add_u32 v11, s53, v206")
for s in range(8):
    e(f"v_xor_b32 v12, {s*32}, v10")
    e(f"ds_read_b128 {vr(KF+4*s,4)}, v12")
for d in range(4):
    e(f"v_xor_b32 v{216+d}, {d*64}, v11")
for s in range(8):
    e(f"s_waitcnt lgkmcnt({7-s})")
    src = "0" if s==0 else vr(SA,16)
    e(f"v_mfma_f32_32x32x16_bf16 {vr(SA,16)}, {vr(KF+4*s,4)}, {vr(QF+4*s,4)}, {src}")
for d in range(4):
    for ks in range(2):
        f=VF+(d*2+ks)*4
        e(f"ds_read_b64_tr_b16 {vr(f,2)}, v{216+d} offset:{ks*4096}")
        e(f"ds_read_b64_tr_b16 {vr(f+2,2)}, v{216+d} offset:{ks*4096+2048}")
e("s_nop 7")
e(f"v_max3_f32 v14, v{SA}, v{SA+1}, v212")
for i in range(2,16,2): e(f"v_max3_f32 v14, v{SA+i}, v{SA+i+1}, v14")
e("v_mov_b32 v15, v14"); e("s_nop 1")
e("v_permlane32_swap_b32 v14, v15"); e("s_nop 1")
e("v_max_f32 v14, v14, v15")
e("v_sub_f32 v15, v212, v14"); e("v_mul_f32 v15, s60, v15"); e("v_exp_f32 v15, v15")
e("v_mov_b32 v212, v14")
e("v_mul_f32 v14, s60, v14")
for i in range(16):
    e(f"v_fma_f32 v{SA+i}, v{SA+i}, s60, -v14")
for i in range(16): e(f"v_exp_f32 v{SA+i}, v{SA+i}")
e("v_mul_f32 v213, v213, v15")
for i in range(16): e(f"v_add_f32 v213, v213, v{SA+i}")
for i in range(8): e(f"v_cvt_pk_bf16_f32 v{PP+i}, v{SA+2*i}, v{SA+2*i+1}")
e("v_cmp_neq_f32 vcc, 1.0, v15"); e("s_nop 1"); e("s_cbranch_vccz A_nors")
for i in range(64): e(f"v_mul_f32 v{OA+i}, v{OA+i}, v15")
e("A_nors:")
e("s_waitcnt lgkmcnt(0)"); e("s_nop 1")
for d in range(4):
    for ks in range(2):
        f=VF+(d*2+ks)*4
        e(f"v_mfma_f32_32x32x16_bf16 {vr(OA+16*d,16)}, {vr(f,4)}, {vr(PP+4*ks,4)}, {vr(OA+16*d,16)}")
e("s_add_u32 s61, s61, 1"); e("s_cmp_lt_u32 s61, 32"); e("s_cbranch_scc1 A_loop")
e("s_nop 15")
e("v_mov_b32 v15, v213"); e("s_nop 1"); e("v_permlane32_swap_b32 v213, v15"); e("s_nop 1")
e("v_add_f32 v213, v213, v15")
e("s_barrier")
e("v_lshlrev_b32 v10, 4, v1"); e("s_lshl_b32 s50, s40, 13"); e("v_add_u32 v10, s50, v10")
e("v_xor_b32 v11, 0x8000, v10")
e("v_lshlrev_b32 v12, 3, v0"); e("v_add_u32 v12, 0x10000, v12"); e("v_xor_b32 v13, 0x800, v12")
e("ds_write_b64 v12, v[212:213]")
e("s_cmp_eq_u32 s41, 0"); e("s_cbranch_scc0 A_e1")
for i in range(8): e(f"ds_write_b128 v10, {vr(OA+32+4*i,4)} offset:{1024*i}")
e("s_branch A_e2"); e("A_e1:")
for i in range(8): e(f"ds_write_b128 v10, {vr(OA+4*i,4)} offset:{1024*i}")
for i in range(32): e(f"v_mov_b32 v{OA+i}, v{OA+32+i}")
e("A_e2:")
e("s_waitcnt lgkmcnt(0)"); e("s_barrier")
e("ds_read_b64 v[214:215], v13")
for i in range(8): e(f"ds_read_b128 {vr(KF+4*i,4)}, v11 offset:{1024*i}")
e("s_waitcnt lgkmcnt(0)")
e("v_max_f32 v14, v212, v214")
e("v_sub_f32 v212, v212, v14"); e("v_sub_f32 v214, v214, v14")
e("v_mul_f32 v212, s60, v212"); e("v_mul_f32 v214, s60, v214")
e("v_exp_f32 v212, v212"); e("v_exp_f32 v214, v214"); e("s_nop 0")
e("v_mul_f32 v14, v212, v213"); e("v_fma_f32 v14, v214, v215, v14")
e("v_rcp_f32 v14, v14"); e("s_nop 0")
e("v_mul_f32 v212, v212, v14"); e("v_mul_f32 v214, v214, v14")
for i in range(32):
    e(f"v_mul_f32 v{OA+i}, v{OA+i}, v212"); e(f"v_fma_f32 v{OA+i}, v{KF+i}, v214, v{OA+i}")
for i in range(16): e(f"v_cvt_pk_bf16_f32 v{SA+i}, v{OA+2*i}, v{OA+2*i+1}")
e("s_lshl_b32 s54, s44, 7"); e("s_lshl_b32 s55, s42, 5"); e("s_add_u32 s54, s54, s55")
e("v_add_u32 v10, s54, v8"); e("v_lshlrev_b32 v10, 13, v10"); e("v_lshl_add_u32 v10, v9, 3, v10")
e("s_lshl_b32 s54, s45, 8"); e("s_lshl_b32 s55, s41, 7"); e("s_add_u32 s54, s54, s55")
for i in range(8):
    e(f"buffer_store_dwordx2 {vr(SA+2*i,2)}, v10, s[32:35], s54 offen offset:{(i//4)*64+(i%4)*16}")
e("A_end:"); e("s_endpgm")
L.append(desc("attn_kernel",256))

e(".globl oproj_kernel\n.p2align 8\n.type oproj_kernel,@function\noproj_kernel:")
e("s_cmp_ge_u32 s2, 256"); e("s_cbranch_scc1 B_end")
e("s_load_dwordx4 s[4:7], s[0:1], 32")
e("s_load_dwordx2 s[12:13], s[0:1], 56")
e("s_waitcnt lgkmcnt(0)")
srd(16,4,4194304); srd(20,6,1048576); srd(24,12,8388608)
e("v_and_b32 v1, 63, v0"); e("v_lshrrev_b32 v2, 6, v0"); e("s_nop 0")
e("v_readfirstlane_b32 s40, v2"); e("s_nop 3")
e("s_and_b32 s41, s2, 15")
e("s_lshr_b32 s42, s2, 4")
e("v_lshrrev_b32 v3, 2, v1"); e("v_and_b32 v4, 3, v1"); e("v_lshlrev_b32 v3, 10, v3"); e("v_lshl_add_u32 v200, v4, 4, v3")
e("s_lshl_b32 s43, s40, 20"); e("s_lshl_b32 s44, s41, 6"); e("s_add_u32 s43, s43, s44")
e("s_lshl_b32 s45, s40, 15")
e("v_and_b32 v8, 31, v1"); e("v_lshrrev_b32 v9, 5, v1"); e("s_lshl_b32 s46, s42, 6")
e("v_add_u32 v10, s46, v8"); e("v_lshlrev_b32 v10, 13, v10"); e("v_lshl_add_u32 v10, v9, 4, v10")
e("s_lshl_b32 s46, s40, 11"); e("v_add_u32 v201, s46, v10"); e("v_add_u32 v202, 0x40000, v201")
e("v_and_b32 v11, 3, v1"); e("v_bfe_u32 v12, v1, 2, 2"); e("v_bfe_u32 v13, v1, 4, 1")
e("v_lshl_add_u32 v12, v9, 3, v12"); e("v_lshlrev_b32 v12, 6, v12"); e("v_lshl_add_u32 v12, v13, 5, v12")
e("v_lshl_add_u32 v12, v11, 3, v12"); e("v_add_u32 v203, s45, v12")
for i in range(32): e(f"v_mov_b32 v{160+i}, 0")
def wodma(r):
    for i in range(16):
        e(f"s_add_u32 s50, s45, {(r%2)*16384+i*1024}"); e(f"s_add_u32 s51, s43, {(r*256+i*16)*1024}")
        e("s_mov_b32 m0, s50"); e("s_nop 0")
        e("buffer_load_dwordx4 v200, s[16:19], s51 offen lds")
wodma(0)
for r in range(4):
    for s in range(16):
        e(f"buffer_load_dwordx4 {vr(16+8*s,4)}, v201, s[24:27], 0 offen offset:{r*512+s*32}")
        e(f"buffer_load_dwordx4 {vr(20+8*s,4)}, v202, s[24:27], 0 offen offset:{r*512+s*32}")
    if r<3:
        wodma(r+1); e("s_waitcnt vmcnt(16)")
    else: e("s_waitcnt vmcnt(0)")
    for s in range(16):
        f=192+(s%4)*4 if False else 208+(s%4)*4
        def rd(n):
            ff=208+(n%4)*4
            e(f"ds_read_b64_tr_b16 {vr(ff,2)}, v203 offset:{(r%2)*16384+n*1024}")
            e(f"ds_read_b64_tr_b16 {vr(ff+2,2)}, v203 offset:{(r%2)*16384+n*1024+256}")
        if s==0:
            rd(0); rd(1)
        if s+2<16: rd(s+2)
        e(f"s_waitcnt lgkmcnt({min(4,2*(15-s))})")
        e(f"v_mfma_f32_32x32x16_bf16 v[160:175], {vr(f,4)}, {vr(16+8*s,4)}, v[160:175]")
        e(f"v_mfma_f32_32x32x16_bf16 v[176:191], {vr(f,4)}, {vr(20+8*s,4)}, v[176:191]")
e("s_nop 15"); e("s_barrier")
e("v_lshlrev_b32 v10, 4, v1"); e("s_lshl_b32 s50, s40, 13"); e("v_add_u32 v10, s50, v10")
for i in range(8): e(f"ds_write_b128 v10, {vr(160+4*i,4)} offset:{1024*i}")
e("s_waitcnt lgkmcnt(0)"); e("s_barrier")
e("v_lshlrev_b32 v10, 4, v1"); e("s_lshl_b32 s50, s40, 11"); e("v_add_u32 v10, s50, v10")
for w in range(4):
    for i in range(2): e(f"ds_read_b128 {vr(16+8*w+4*i,4)}, v10 offset:{w*8192+i*1024}")
e("s_waitcnt lgkmcnt(0)")
for w in range(1,4):
    for i in range(8): e(f"v_add_f32 v{16+i}, v{16+i}, v{16+8*w+i}")
for i in range(4): e(f"v_cvt_pk_bf16_f32 v{60+i}, v{16+2*i}, v{17+2*i}")
e("s_lshr_b32 s50, s40, 1"); e("s_lshl_b32 s50, s50, 5"); e("s_lshl_b32 s51, s42, 6"); e("s_add_u32 s50, s50, s51")
e("v_add_u32 v10, s50, v8"); e("v_lshlrev_b32 v10, 10, v10"); e("v_lshl_add_u32 v10, v9, 3, v10")
e("s_and_b32 s50, s40, 1"); e("s_lshl_b32 s50, s50, 5"); e("s_lshl_b32 s51, s41, 6"); e("s_add_u32 s50, s50, s51")
e("buffer_store_dwordx2 v[60:61], v10, s[20:23], s50 offen")
e("buffer_store_dwordx2 v[62:63], v10, s[20:23], s50 offen offset:16")
e("B_end:"); e("s_endpgm")
L.append(desc("oproj_kernel",256))
open("standalone__gqa_block_cached__near_ridge.s","w").write(HDR+"\n".join(L)+"\n")
```

```python
import math,os,sys
MODE=os.environ.get("MODE","")
OUT=os.environ.get("OUT","standalone__gqa_block_cached__near_ridge.s")
L=[]
def e(s): L.append(s)
def vr(a,n): return f"v[{a}:{a+n-1}]"
HDR='''; @launch kernel=attn_kernel grid=(256,1,1) block=(512,1,1) lds=163840
; @launch kernel=oproj_kernel grid=(256,1,1) block=(256,1,1) lds=131072
.amdgcn_target "amdgcn-amd-amdhsa--gfx950"
.text
'''
def srd(d,p,n):
    e(f"s_mov_b32 s{d}, s{p}"); e(f"s_mov_b32 s{d+1}, s{p+1}")
    e(f"s_mov_b32 s{d+2}, {n}"); e(f"s_mov_b32 s{d+3}, 0x00020000")
def desc(name,nv):
    return f'''.section .rodata,"a"
.p2align 6
.amdhsa_kernel {name}
  .amdhsa_next_free_vgpr {nv}
  .amdhsa_next_free_sgpr 102
  .amdhsa_accum_offset {min(256,(nv+3)//4*4)}
  .amdhsa_group_segment_fixed_size 0
  .amdhsa_kernarg_size 64
  .amdhsa_user_sgpr_count 2
  .amdhsa_user_sgpr_kernarg_segment_ptr 1
  .amdhsa_system_sgpr_workgroup_id_x 1
.end_amdhsa_kernel
.text
'''
QF,OA,SA,KF,VF,PP=16,48,112,128,160,192
e(".globl attn_kernel\n.p2align 8\n.type attn_kernel,@function\nattn_kernel:")
e("s_cmp_ge_u32 s2, 256"); e("s_cbranch_scc1 A_end")
e("s_load_dwordx8 s[4:11], s[0:1], 0")
e("s_load_dwordx2 s[12:13], s[0:1], 56")
e("s_waitcnt lgkmcnt(0)")
srd(16,4,1048576); srd(20,6,134217728); srd(24,8,134217728); srd(28,10,4194304); srd(32,12,8388608)
e("v_and_b32 v1, 63, v0")
e("v_lshrrev_b32 v2, 6, v0")
e("s_nop 0"); e("v_readfirstlane_b32 s40, v2")
e("s_nop 3")
e("s_lshr_b32 s41, s40, 2")
e("s_and_b32 s42, s40, 3")
e("s_lshl_b32 s43, s2, 19")
e("s_lshr_b32 s44, s2, 5")
e("s_and_b32 s45, s2, 31")
e("v_lshrrev_b32 v3, 4, v1")
e("v_and_b32 v4, 15, v1")
e("s_lshl_b32 s46, s40, 2")
e("v_add_u32 v5, s46, v3")
e("v_and_b32 v6, 15, v5"); e("v_xor_b32 v6, v6, v4")
e("v_lshlrev_b32 v7, 8, v5"); e("v_lshl_add_u32 v200, v6, 4, v7")
e("v_lshlrev_b32 v6, 2, v3"); e("v_xor_b32 v6, v6, v4")
e("v_lshl_add_u32 v201, v6, 4, v7")
e("v_lshlrev_b32 v7, 13, v5"); e("v_lshl_add_u32 v202, v6, 4, v7")
if MODE=="dmans":
    e("v_lshlrev_b32 v200, 4, v1"); e("s_lshl_b32 s46, s40, 10"); e("v_add_u32 v200, s46, v200"); e("v_mov_b32 v201, v200")
e("s_lshl_b32 s47, s40, 10")
e("s_mul_i32 s62, s2, 5")
def dma_unit(sunit_off, slot_s):
    for part,(sr,vo) in enumerate(((20,200),(24,201))):
        for i in range(2):
            e(f"s_add_u32 s50, {slot_s}, s47")
            e(f"s_add_u32 s50, s50, {part*16384+i*8192}")
            e(f"s_add_u32 s51, {sunit_off}, {i*8192}")
            e("s_mov_b32 m0, s50"); e("s_nop 0")
            e(f"buffer_load_dwordx4 v{vo}, s[{sr}:{sr+3}], s51 offen"+" nt"+" lds")
for u in range(3):
    e(f"s_add_u32 s52, s62, {u}"); e("s_and_b32 s52, s52, 31"); e("s_lshl_b32 s52, s52, 14")
    e("s_add_u32 s52, s52, s43"); e(f"s_mov_b32 s53, {u*32768}")
    dma_unit("s52","s53")
e("v_and_b32 v8, 31, v1"); e("v_lshrrev_b32 v9, 5, v1")
e("s_lshl_b32 s54, s44, 7"); e("s_lshl_b32 s55, s42, 5"); e("s_add_u32 s54, s54, s55")
e("v_add_u32 v10, s54, v8"); e("v_lshlrev_b32 v10, 10, v10"); e("v_lshl_add_u32 v203, v9, 4, v10")
e("v_and_b32 v11, 3, v1")
e("v_bfe_u32 v12, v1, 2, 2")
e("v_bfe_u32 v13, v1, 4, 1")
e("v_and_b32 v14, 1, v11"); e("v_lshrrev_b32 v15, 1, v11")
e("v_lshl_add_u32 v204, v13, 1, v14"); e("v_lshlrev_b32 v205, 2, v12"); e("v_xor_b32 v204, v204, v205")
e("v_lshlrev_b32 v204, 4, v204"); e("v_lshl_add_u32 v204, v15, 3, v204")
e("v_lshl_add_u32 v205, v9, 3, v12"); e("v_lshl_add_u32 v204, v205, 8, v204")
e("s_lshl_b32 s55, s41, 7")
e("v_xor_b32 v204, s55, v204")
e("v_add_u32 v204, 0x18000, v204")
e("v_xor_b32 v205, 64, v204")
e("v_lshl_add_u32 v206, v13, 1, v15"); e("v_lshlrev_b32 v207, 2, v12"); e("v_xor_b32 v206, v206, v207")
e("v_lshlrev_b32 v206, 4, v206"); e("v_lshl_add_u32 v206, v14, 3, v206")
e("v_lshl_add_u32 v207, v9, 2, v12"); e("s_lshl_b32 s55, s41, 5"); e("v_add_u32 v207, s55, v207")
e("v_lshl_add_u32 v206, v207, 8, v206"); e("v_add_u32 v206, 16384, v206")
e("v_add_u32 v207, s55, v8"); e("v_and_b32 v208, 15, v207"); e("v_xor_b32 v208, v208, v9")
e("v_lshlrev_b32 v208, 4, v208"); e("v_lshl_add_u32 v207, v207, 8, v208")
AC=208
for i in range(32): e(f"v_mov_b32 v{AC+i}, 0")
for half in range(2):
    if half: e("s_barrier")
    for i in range(8):
        e(f"s_add_u32 s50, s47, {0x18000+i*8192}")
        e(f"s_lshl_b32 s51, s45, 8"); e(f"s_add_u32 s51, s51, {(half*256+i*32)*8192}")
        e("s_mov_b32 m0, s50"); e("s_nop 0")
        e("buffer_load_dwordx4 v202, s[28:31], s51 offen lds")
    for s in range(16):
        e(f"buffer_load_dwordx4 {vr(OA+4*s,4)}, v203, s[16:19], 0 offen offset:{half*512+s*32}")
    e("s_waitcnt vmcnt(0)"); e("s_barrier")
    for s in range(16):
        for d,ar in enumerate((204,205)):
            f=KF+((s*2+d)%8)*4
            def rd(n):
                ss,dd=n//2,n%2; ff=KF+(n%8)*4
                e(f"ds_read_b64_tr_b16 {vr(ff,2)}, v{204+dd} offset:{ss*4096}")
                e(f"ds_read_b64_tr_b16 {vr(ff+2,2)}, v{204+dd} offset:{ss*4096+1024}")
            n=s*2+d
            if n==0:
                for k in range(4): rd(k)
            if n+4<32: rd(n+4)
            e(f"s_waitcnt lgkmcnt({min(8,2*(31-n))})")
            e(f"v_mfma_f32_32x32x16_bf16 {vr(AC+16*d,16)}, {vr(f,4)}, {vr(OA+4*s,4)}, {vr(AC+16*d,16)}")
e("s_nop 15"); e("s_barrier")
for i in range(16): e(f"v_cvt_pk_bf16_f32 v{KF+i}, v{AC+2*i}, v{AC+2*i+1}")
e("v_lshlrev_b32 v10, 6, v0"); e("v_add_u32 v10, 0x18000, v10")
e("v_xor_b32 v11, 0x4000, v10")
for i in range(4): e(f"ds_write_b128 v10, {vr(KF+4*i,4)} offset:{16*i}")
e("s_waitcnt lgkmcnt(0)"); e("s_barrier")
for i in range(4): e(f"ds_read_b128 {vr(VF+4*i,4)}, v11 offset:{16*i}")
e("s_waitcnt lgkmcnt(0)")
e("s_cmp_eq_u32 s41, 0"); e("s_cbranch_scc0 A_g1")
for i in range(16): e(f"v_mov_b32 v{QF+i}, v{KF+i}"); e(f"v_mov_b32 v{QF+16+i}, v{VF+i}")
e("s_branch A_q"); e("A_g1:")
for i in range(16): e(f"v_mov_b32 v{QF+16+i}, v{KF+i}"); e(f"v_mov_b32 v{QF+i}, v{VF+i}")
e("A_q:")
e("s_barrier")
for i in range(64): e(f"v_mov_b32 v{OA+i}, 0")
e("v_mov_b32 v212, 0xff800000")
e("v_mov_b32 v213, 0")
c=math.log2(math.e)/math.sqrt(128)
import struct
cb=struct.unpack('<I',struct.pack('<f',c))[0]
e(f"s_mov_b32 s60, 0x{cb:08x}")
e("s_mov_b32 s61, 0")
e("A_loop:")
e("s_cmp_ge_u32 s61, 29"); e("s_cbranch_scc1 A_w0")
e("s_waitcnt vmcnt(8)"); e("s_branch A_w1")
e("A_w0:"); e("s_waitcnt vmcnt(0)"); e("A_w1:")
e("s_barrier")
e("s_cmp_ge_u32 s61, 29"); e("s_cbranch_scc1 A_nodma")
if MODE in("comp","none"): e("s_branch A_nodma")
e("s_add_u32 s52, s61, 3"); e("s_and_b32 s53, s52, 3"); e("s_lshl_b32 s53, s53, 15")
e("s_add_u32 s52, s52, s62"); e("s_and_b32 s52, s52, 31")
e("s_lshl_b32 s52, s52, 14"); e("s_add_u32 s52, s52, s43")
dma_unit("s52","s53")
e("A_nodma:")
if MODE in("dma","none","dmans","dmant"): e("s_branch A_next")
e("s_and_b32 s53, s61, 3"); e("s_lshl_b32 s53, s53, 15")
e("v_add_u32 v10, s53, v207"); e("v_add_u32 v11, s53, v206")
for s in range(8):
    e(f"v_xor_b32 v12, {s*32}, v10")
    e(f"ds_read_b128 {vr(KF+4*s,4)}, v12")
for d in range(4):
    e(f"v_xor_b32 v{216+d}, {d*64}, v11")
for s in range(8):
    e(f"s_waitcnt lgkmcnt({7-s})")
    src = "0" if s==0 else vr(SA,16)
    e(f"v_mfma_f32_32x32x16_bf16 {vr(SA,16)}, {vr(KF+4*s,4)}, {vr(QF+4*s,4)}, {src}")
for d in range(4):
    for ks in range(2):
        f=VF+(d*2+ks)*4
        e(f"ds_read_b64_tr_b16 {vr(f,2)}, v{216+d} offset:{ks*4096}")
        e(f"ds_read_b64_tr_b16 {vr(f+2,2)}, v{216+d} offset:{ks*4096+2048}")
e("s_nop 7")
e(f"v_max3_f32 v14, v{SA}, v{SA+1}, v212")
for i in range(2,16,2): e(f"v_max3_f32 v14, v{SA+i}, v{SA+i+1}, v14")
e("v_mov_b32 v15, v14"); e("s_nop 1")
e("v_permlane32_swap_b32 v14, v15"); e("s_nop 1")
e("v_max_f32 v14, v14, v15")
e("v_sub_f32 v15, v212, v14"); e("v_mul_f32 v15, s60, v15"); e("v_exp_f32 v15, v15")
e("v_mov_b32 v212, v14")
e("v_mul_f32 v14, s60, v14")
for i in range(16):
    e(f"v_fma_f32 v{SA+i}, v{SA+i}, s60, -v14")
for i in range(16): e(f"v_exp_f32 v{SA+i}, v{SA+i}")
e("v_mul_f32 v213, v213, v15")
for i in range(16): e(f"v_add_f32 v213, v213, v{SA+i}")
for i in range(8): e(f"v_cvt_pk_bf16_f32 v{PP+i}, v{SA+2*i}, v{SA+2*i+1}")
e("v_cmp_neq_f32 vcc, 1.0, v15"); e("s_nop 1"); e("s_cbranch_vccz A_nors")
for i in range(64): e(f"v_mul_f32 v{OA+i}, v{OA+i}, v15")
e("A_nors:")
e("s_waitcnt lgkmcnt(0)"); e("s_nop 1")
for d in range(4):
    for ks in range(2):
        f=VF+(d*2+ks)*4
        e(f"v_mfma_f32_32x32x16_bf16 {vr(OA+16*d,16)}, {vr(f,4)}, {vr(PP+4*ks,4)}, {vr(OA+16*d,16)}")
e("A_next:")
e("s_add_u32 s61, s61, 1"); e("s_cmp_lt_u32 s61, 32"); e("s_cbranch_scc1 A_loop")
e("s_nop 15")
e("v_mov_b32 v15, v213"); e("s_nop 1"); e("v_permlane32_swap_b32 v213, v15"); e("s_nop 1")
e("v_add_f32 v213, v213, v15")
e("s_barrier")
e("v_lshlrev_b32 v10, 4, v1"); e("s_lshl_b32 s50, s40, 13"); e("v_add_u32 v10, s50, v10")
e("v_xor_b32 v11, 0x8000, v10")
e("v_lshlrev_b32 v12, 3, v0"); e("v_add_u32 v12, 0x10000, v12"); e("v_xor_b32 v13, 0x800, v12")
e("ds_write_b64 v12, v[212:213]")
e("s_cmp_eq_u32 s41, 0"); e("s_cbranch_scc0 A_e1")
for i in range(8): e(f"ds_write_b128 v10, {vr(OA+32+4*i,4)} offset:{1024*i}")
e("s_branch A_e2"); e("A_e1:")
for i in range(8): e(f"ds_write_b128 v10, {vr(OA+4*i,4)} offset:{1024*i}")
for i in range(32): e(f"v_mov_b32 v{OA+i}, v{OA+32+i}")
e("A_e2:")
e("s_waitcnt lgkmcnt(0)"); e("s_barrier")
e("ds_read_b64 v[214:215], v13")
for i in range(8): e(f"ds_read_b128 {vr(KF+4*i,4)}, v11 offset:{1024*i}")
e("s_waitcnt lgkmcnt(0)")
e("v_max_f32 v14, v212, v214")
e("v_sub_f32 v212, v212, v14"); e("v_sub_f32 v214, v214, v14")
e("v_mul_f32 v212, s60, v212"); e("v_mul_f32 v214, s60, v214")
e("v_exp_f32 v212, v212"); e("v_exp_f32 v214, v214"); e("s_nop 0")
e("v_mul_f32 v14, v212, v213"); e("v_fma_f32 v14, v214, v215, v14")
e("v_rcp_f32 v14, v14"); e("s_nop 0")
e("v_mul_f32 v212, v212, v14"); e("v_mul_f32 v214, v214, v14")
for i in range(32):
    e(f"v_mul_f32 v{OA+i}, v{OA+i}, v212"); e(f"v_fma_f32 v{OA+i}, v{KF+i}, v214, v{OA+i}")
for i in range(16): e(f"v_cvt_pk_bf16_f32 v{SA+i}, v{OA+2*i}, v{OA+2*i+1}")
e("s_lshl_b32 s54, s44, 7"); e("s_lshl_b32 s55, s42, 5"); e("s_add_u32 s54, s54, s55")
e("v_add_u32 v10, s54, v8"); e("v_lshlrev_b32 v10, 13, v10"); e("v_lshl_add_u32 v10, v9, 3, v10")
e("s_lshl_b32 s54, s45, 8"); e("s_lshl_b32 s55, s41, 7"); e("s_add_u32 s54, s54, s55")
for i in range(8):
    e(f"buffer_store_dwordx2 {vr(SA+2*i,2)}, v10, s[32:35], s54 offen offset:{(i//4)*64+(i%4)*16}")
e("A_end:"); e("s_endpgm")
L.append(desc("attn_kernel",256))

e(".globl oproj_kernel\n.p2align 8\n.type oproj_kernel,@function\noproj_kernel:")
e("s_cmp_ge_u32 s2, 256"); e("s_cbranch_scc1 B_end")
e("s_load_dwordx4 s[4:7], s[0:1], 32")
e("s_load_dwordx2 s[12:13], s[0:1], 56")
e("s_waitcnt lgkmcnt(0)")
srd(16,4,4194304); srd(20,6,1048576); srd(24,12,8388608)
e("v_and_b32 v1, 63, v0"); e("v_lshrrev_b32 v2, 6, v0"); e("s_nop 0")
e("v_readfirstlane_b32 s40, v2"); e("s_nop 3")
e("s_and_b32 s41, s2, 15")
e("s_lshr_b32 s42, s2, 4")
e("v_lshrrev_b32 v3, 2, v1"); e("v_and_b32 v4, 3, v1"); e("v_lshlrev_b32 v3, 10, v3"); e("v_lshl_add_u32 v200, v4, 4, v3")
e("s_lshl_b32 s43, s40, 20"); e("s_lshl_b32 s44, s41, 6"); e("s_add_u32 s43, s43, s44")
e("s_lshl_b32 s45, s40, 15")
e("v_and_b32 v8, 31, v1"); e("v_lshrrev_b32 v9, 5, v1"); e("s_lshl_b32 s46, s42, 6")
e("v_add_u32 v10, s46, v8"); e("v_lshlrev_b32 v10, 13, v10"); e("v_lshl_add_u32 v10, v9, 4, v10")
e("s_lshl_b32 s46, s40, 11"); e("v_add_u32 v201, s46, v10"); e("v_add_u32 v202, 0x40000, v201")
e("v_and_b32 v11, 3, v1"); e("v_bfe_u32 v12, v1, 2, 2"); e("v_bfe_u32 v13, v1, 4, 1")
e("v_lshl_add_u32 v12, v9, 3, v12"); e("v_lshlrev_b32 v12, 6, v12"); e("v_lshl_add_u32 v12, v13, 5, v12")
e("v_lshl_add_u32 v12, v11, 3, v12"); e("v_add_u32 v203, s45, v12")
for i in range(32): e(f"v_mov_b32 v{160+i}, 0")
def wodma(r):
    for i in range(16):
        e(f"s_add_u32 s50, s45, {(r%2)*16384+i*1024}"); e(f"s_add_u32 s51, s43, {(r*256+i*16)*1024}")
        e("s_mov_b32 m0, s50"); e("s_nop 0")
        e("buffer_load_dwordx4 v200, s[16:19], s51 offen lds")
wodma(0)
for r in range(4):
    for s in range(16):
        e(f"buffer_load_dwordx4 {vr(16+8*s,4)}, v201, s[24:27], 0 offen offset:{r*512+s*32}")
        e(f"buffer_load_dwordx4 {vr(20+8*s,4)}, v202, s[24:27], 0 offen offset:{r*512+s*32}")
    if r<3:
        wodma(r+1); e("s_waitcnt vmcnt(16)")
    else: e("s_waitcnt vmcnt(0)")
    for s in range(16):
        f=192+(s%4)*4 if False else 208+(s%4)*4
        def rd(n):
            ff=208+(n%4)*4
            e(f"ds_read_b64_tr_b16 {vr(ff,2)}, v203 offset:{(r%2)*16384+n*1024}")
            e(f"ds_read_b64_tr_b16 {vr(ff+2,2)}, v203 offset:{(r%2)*16384+n*1024+256}")
        if s==0:
            rd(0); rd(1)
        if s+2<16: rd(s+2)
        e(f"s_waitcnt lgkmcnt({min(4,2*(15-s))})")
        e(f"v_mfma_f32_32x32x16_bf16 v[160:175], {vr(f,4)}, {vr(16+8*s,4)}, v[160:175]")
        e(f"v_mfma_f32_32x32x16_bf16 v[176:191], {vr(f,4)}, {vr(20+8*s,4)}, v[176:191]")
e("s_nop 15"); e("s_barrier")
e("v_lshlrev_b32 v10, 4, v1"); e("s_lshl_b32 s50, s40, 13"); e("v_add_u32 v10, s50, v10")
for i in range(8): e(f"ds_write_b128 v10, {vr(160+4*i,4)} offset:{1024*i}")
e("s_waitcnt lgkmcnt(0)"); e("s_barrier")
e("v_lshlrev_b32 v10, 4, v1"); e("s_lshl_b32 s50, s40, 11"); e("v_add_u32 v10, s50, v10")
for w in range(4):
    for i in range(2): e(f"ds_read_b128 {vr(16+8*w+4*i,4)}, v10 offset:{w*8192+i*1024}")
e("s_waitcnt lgkmcnt(0)")
for w in range(1,4):
    for i in range(8): e(f"v_add_f32 v{16+i}, v{16+i}, v{16+8*w+i}")
for i in range(4): e(f"v_cvt_pk_bf16_f32 v{60+i}, v{16+2*i}, v{17+2*i}")
e("s_lshr_b32 s50, s40, 1"); e("s_lshl_b32 s50, s50, 5"); e("s_lshl_b32 s51, s42, 6"); e("s_add_u32 s50, s50, s51")
e("v_add_u32 v10, s50, v8"); e("v_lshlrev_b32 v10, 10, v10"); e("v_lshl_add_u32 v10, v9, 3, v10")
e("s_and_b32 s50, s40, 1"); e("s_lshl_b32 s50, s50, 5"); e("s_lshl_b32 s51, s41, 6"); e("s_add_u32 s50, s50, s51")
e("buffer_store_dwordx2 v[60:61], v10, s[20:23], s50 offen")
e("buffer_store_dwordx2 v[62:63], v10, s[20:23], s50 offen offset:16")
e("B_end:"); e("s_endpgm")
L.append(desc("oproj_kernel",256))
open(OUT,"w").write(HDR+"\n".join(L)+"\n")
```

```python
import math,os,sys
MODE=os.environ.get("MODE","")
OUT=os.environ.get("OUT","standalone__gqa_block_cached__near_ridge.s")
L=[]
def e(s): L.append(s)
def vr(a,n): return f"v[{a}:{a+n-1}]"
HDR='''; @launch kernel=attn_kernel grid=(256,1,1) block=(512,1,1) lds=163840
; @launch kernel=oproj_kernel grid=(256,1,1) block=(256,1,1) lds=131072
.amdgcn_target "amdgcn-amd-amdhsa--gfx950"
.text
'''
def srd(d,p,n):
    e(f"s_mov_b32 s{d}, s{p}"); e(f"s_mov_b32 s{d+1}, s{p+1}")
    e(f"s_mov_b32 s{d+2}, {n}"); e(f"s_mov_b32 s{d+3}, 0x00020000")
def desc(name,nv):
    return f'''.section .rodata,"a"
.p2align 6
.amdhsa_kernel {name}
  .amdhsa_next_free_vgpr {nv}
  .amdhsa_next_free_sgpr 102
  .amdhsa_accum_offset {min(256,(nv+3)//4*4)}
  .amdhsa_group_segment_fixed_size 0
  .amdhsa_kernarg_size 64
  .amdhsa_user_sgpr_count 2
  .amdhsa_user_sgpr_kernarg_segment_ptr 1
  .amdhsa_system_sgpr_workgroup_id_x 1
.end_amdhsa_kernel
.text
'''
QF,OA,SA,KF,VF,PP=16,48,112,128,160,192
e(".globl attn_kernel\n.p2align 8\n.type attn_kernel,@function\nattn_kernel:")
e("s_cmp_ge_u32 s2, 256"); e("s_cbranch_scc1 A_end")
e("s_load_dwordx8 s[4:11], s[0:1], 0")
e("s_load_dwordx2 s[12:13], s[0:1], 56")
e("s_waitcnt lgkmcnt(0)")
srd(16,4,1048576); srd(20,6,134217728); srd(24,8,134217728); srd(28,10,4194304); srd(32,12,8388608)
e("v_and_b32 v1, 63, v0")
e("v_lshrrev_b32 v2, 6, v0")
e("s_nop 0"); e("v_readfirstlane_b32 s40, v2")
e("s_nop 3")
e("s_lshr_b32 s41, s40, 2")
e("s_and_b32 s42, s40, 3")
e("s_lshl_b32 s43, s2, 19")
e("s_lshr_b32 s44, s2, 5")
e("s_and_b32 s45, s2, 31")
e("v_lshrrev_b32 v3, 4, v1")
e("v_and_b32 v4, 15, v1")
e("s_lshl_b32 s46, s40, 2")
e("v_add_u32 v5, s46, v3")
e("v_and_b32 v6, 15, v5"); e("v_xor_b32 v6, v6, v4")
e("v_lshlrev_b32 v7, 8, v5"); e("v_lshl_add_u32 v200, v6, 4, v7")
e("v_lshlrev_b32 v6, 2, v3"); e("v_xor_b32 v6, v6, v4")
e("v_lshl_add_u32 v201, v6, 4, v7")
e("v_lshlrev_b32 v7, 13, v5"); e("v_lshl_add_u32 v202, v6, 4, v7")
if MODE=="dmans":
    e("v_lshlrev_b32 v200, 4, v1"); e("s_lshl_b32 s46, s40, 10"); e("v_add_u32 v200, s46, v200"); e("v_mov_b32 v201, v200")
e("s_lshl_b32 s47, s40, 10")
e("s_mul_i32 s62, s2, 5")
def dma_unit(sunit_off, slot_s):
    for part,(sr,vo) in enumerate(((20,200),(24,201))):
        for i in range(2):
            e(f"s_add_u32 s50, {slot_s}, s47")
            e(f"s_add_u32 s50, s50, {part*16384+i*8192}")
            e(f"s_add_u32 s51, {sunit_off}, {i*8192}")
            e("s_mov_b32 m0, s50"); e("s_nop 0")
            e(f"buffer_load_dwordx4 v{vo}, s[{sr}:{sr+3}], s51 offen"+" nt"+" lds")
for u in range(3):
    e(f"s_add_u32 s52, s62, {u}"); e("s_and_b32 s52, s52, 31"); e("s_lshl_b32 s52, s52, 14")
    e("s_add_u32 s52, s52, s43"); e(f"s_mov_b32 s53, {u*32768}")
    dma_unit("s52","s53")
e("v_and_b32 v8, 31, v1"); e("v_lshrrev_b32 v9, 5, v1")
e("s_lshl_b32 s54, s44, 7"); e("s_lshl_b32 s55, s42, 5"); e("s_add_u32 s54, s54, s55")
e("v_add_u32 v10, s54, v8"); e("v_lshlrev_b32 v10, 10, v10"); e("v_lshl_add_u32 v203, v9, 4, v10")
e("v_and_b32 v11, 3, v1")
e("v_bfe_u32 v12, v1, 2, 2")
e("v_bfe_u32 v13, v1, 4, 1")
e("v_and_b32 v14, 1, v11"); e("v_lshrrev_b32 v15, 1, v11")
e("v_lshl_add_u32 v204, v13, 1, v14"); e("v_lshlrev_b32 v205, 2, v12"); e("v_xor_b32 v204, v204, v205")
e("v_lshlrev_b32 v204, 4, v204"); e("v_lshl_add_u32 v204, v15, 3, v204")
e("v_lshl_add_u32 v205, v9, 3, v12"); e("v_lshl_add_u32 v204, v205, 8, v204")
e("s_lshl_b32 s55, s41, 7")
e("v_xor_b32 v204, s55, v204")
e("v_add_u32 v204, 0x18000, v204")
e("v_xor_b32 v205, 64, v204")
e("v_lshl_add_u32 v206, v13, 1, v15"); e("v_lshlrev_b32 v207, 2, v12"); e("v_xor_b32 v206, v206, v207")
e("v_lshlrev_b32 v206, 4, v206"); e("v_lshl_add_u32 v206, v14, 3, v206")
e("v_lshl_add_u32 v207, v9, 2, v12"); e("s_lshl_b32 s55, s41, 5"); e("v_add_u32 v207, s55, v207")
e("v_lshl_add_u32 v206, v207, 8, v206"); e("v_add_u32 v206, 16384, v206")
e("v_add_u32 v207, s55, v8"); e("v_and_b32 v208, 15, v207"); e("v_xor_b32 v208, v208, v9")
e("v_lshlrev_b32 v208, 4, v208"); e("v_lshl_add_u32 v207, v207, 8, v208")
AC=208
for i in range(32): e(f"v_mov_b32 v{AC+i}, 0")
for half in range(2):
    if half: e("s_barrier")
    for i in range(8):
        e(f"s_add_u32 s50, s47, {0x18000+i*8192}")
        e(f"s_lshl_b32 s51, s45, 8"); e(f"s_add_u32 s51, s51, {(half*256+i*32)*8192}")
        e("s_mov_b32 m0, s50"); e("s_nop 0")
        e("buffer_load_dwordx4 v202, s[28:31], s51 offen lds")
    for s in range(16):
        e(f"buffer_load_dwordx4 {vr(OA+4*s,4)}, v203, s[16:19], 0 offen offset:{half*512+s*32}")
    e("s_waitcnt vmcnt(0)"); e("s_barrier")
    for s in range(16):
        for d,ar in enumerate((204,205)):
            f=KF+((s*2+d)%8)*4
            def rd(n):
                ss,dd=n//2,n%2; ff=KF+(n%8)*4
                e(f"ds_read_b64_tr_b16 {vr(ff,2)}, v{204+dd} offset:{ss*4096}")
                e(f"ds_read_b64_tr_b16 {vr(ff+2,2)}, v{204+dd} offset:{ss*4096+1024}")
            n=s*2+d
            if n==0:
                for k in range(4): rd(k)
            if n+4<32: rd(n+4)
            e(f"s_waitcnt lgkmcnt({min(8,2*(31-n))})")
            e(f"v_mfma_f32_32x32x16_bf16 {vr(AC+16*d,16)}, {vr(f,4)}, {vr(OA+4*s,4)}, {vr(AC+16*d,16)}")
e("s_nop 15"); e("s_barrier")
for i in range(16): e(f"v_cvt_pk_bf16_f32 v{KF+i}, v{AC+2*i}, v{AC+2*i+1}")
e("v_lshlrev_b32 v10, 6, v0"); e("v_add_u32 v10, 0x18000, v10")
e("v_xor_b32 v11, 0x4000, v10")
for i in range(4): e(f"ds_write_b128 v10, {vr(KF+4*i,4)} offset:{16*i}")
e("s_waitcnt lgkmcnt(0)"); e("s_barrier")
for i in range(4): e(f"ds_read_b128 {vr(VF+4*i,4)}, v11 offset:{16*i}")
e("s_waitcnt lgkmcnt(0)")
e("s_cmp_eq_u32 s41, 0"); e("s_cbranch_scc0 A_g1")
for i in range(16): e(f"v_mov_b32 v{QF+i}, v{KF+i}"); e(f"v_mov_b32 v{QF+16+i}, v{VF+i}")
e("s_branch A_q"); e("A_g1:")
for i in range(16): e(f"v_mov_b32 v{QF+16+i}, v{KF+i}"); e(f"v_mov_b32 v{QF+i}, v{VF+i}")
e("A_q:")
e("s_barrier")
for i in range(64): e(f"v_mov_b32 v{OA+i}, 0")
e("v_mov_b32 v212, 0xff800000")
e("v_mov_b32 v213, 0")
c=math.log2(math.e)/math.sqrt(128)
import struct
cb=struct.unpack('<I',struct.pack('<f',c))[0]
e(f"s_mov_b32 s60, 0x{cb:08x}")
e("s_mov_b32 s61, 0")
e("A_loop:")
e("s_cmp_ge_u32 s61, 29"); e("s_cbranch_scc1 A_w0")
e("s_waitcnt vmcnt(8)"); e("s_branch A_w1")
e("A_w0:"); e("s_waitcnt vmcnt(0)"); e("A_w1:")
e("s_barrier")
e("s_cmp_ge_u32 s61, 29"); e("s_cbranch_scc1 A_nodma")
if MODE in("comp","none"): e("s_branch A_nodma")
e("s_add_u32 s52, s61, 3"); e("s_and_b32 s53, s52, 3"); e("s_lshl_b32 s53, s53, 15")
e("s_add_u32 s52, s52, s62"); e("s_and_b32 s52, s52, 31")
e("s_lshl_b32 s52, s52, 14"); e("s_add_u32 s52, s52, s43")
dma_unit("s52","s53")
e("A_nodma:")
if MODE in("dma","none","dmans","dmant"): e("s_branch A_next")
e("s_and_b32 s53, s61, 3"); e("s_lshl_b32 s53, s53, 15")
e("v_add_u32 v10, s53, v207"); e("v_add_u32 v11, s53, v206")
for s in range(8):
    e(f"v_xor_b32 v12, {s*32}, v10")
    e(f"ds_read_b128 {vr(KF+4*s,4)}, v12")
for d in range(4):
    e(f"v_xor_b32 v{216+d}, {d*64}, v11")
for s in range(8):
    e(f"s_waitcnt lgkmcnt({7-s})")
    src = "0" if s==0 else vr(SA,16)
    e(f"v_mfma_f32_32x32x16_bf16 {vr(SA,16)}, {vr(KF+4*s,4)}, {vr(QF+4*s,4)}, {src}")
for d in range(4):
    for ks in range(2):
        f=VF+(d*2+ks)*4
        e(f"ds_read_b64_tr_b16 {vr(f,2)}, v{216+d} offset:{ks*4096}")
        e(f"ds_read_b64_tr_b16 {vr(f+2,2)}, v{216+d} offset:{ks*4096+2048}")
e("s_nop 7")
e(f"v_max3_f32 v14, v{SA}, v{SA+1}, v212")
for i in range(2,16,2): e(f"v_max3_f32 v14, v{SA+i}, v{SA+i+1}, v14")
e("v_mov_b32 v15, v14"); e("s_nop 1")
e("v_permlane32_swap_b32 v14, v15"); e("s_nop 1")
e("v_max_f32 v14, v14, v15")
e("v_sub_f32 v15, v212, v14"); e("v_mul_f32 v15, s60, v15"); e("v_exp_f32 v15, v15")
e("v_mov_b32 v212, v14")
e("v_mul_f32 v14, s60, v14")
for i in range(16):
    e(f"v_fma_f32 v{SA+i}, v{SA+i}, s60, -v14")
for i in range(16): e(f"v_exp_f32 v{SA+i}, v{SA+i}")
e("v_mul_f32 v213, v213, v15")
for i in range(16): e(f"v_add_f32 v213, v213, v{SA+i}")
for i in range(8): e(f"v_cvt_pk_bf16_f32 v{PP+i}, v{SA+2*i}, v{SA+2*i+1}")
e("v_cmp_neq_f32 vcc, 1.0, v15"); e("s_nop 1"); e("s_cbranch_vccz A_nors")
for i in range(64): e(f"v_mul_f32 v{OA+i}, v{OA+i}, v15")
e("A_nors:")
e("s_waitcnt lgkmcnt(0)"); e("s_nop 1")
for d in range(4):
    for ks in range(2):
        f=VF+(d*2+ks)*4
        e(f"v_mfma_f32_32x32x16_bf16 {vr(OA+16*d,16)}, {vr(f,4)}, {vr(PP+4*ks,4)}, {vr(OA+16*d,16)}")
e("A_next:")
e("s_add_u32 s61, s61, 1"); e("s_cmp_lt_u32 s61, 32"); e("s_cbranch_scc1 A_loop")
e("s_nop 15")
e("v_mov_b32 v15, v213"); e("s_nop 1"); e("v_permlane32_swap_b32 v213, v15"); e("s_nop 1")
e("v_add_f32 v213, v213, v15")
e("s_barrier")
e("v_lshlrev_b32 v10, 4, v1"); e("s_lshl_b32 s50, s40, 13"); e("v_add_u32 v10, s50, v10")
e("v_xor_b32 v11, 0x8000, v10")
e("v_lshlrev_b32 v12, 3, v0"); e("v_add_u32 v12, 0x10000, v12"); e("v_xor_b32 v13, 0x800, v12")
e("ds_write_b64 v12, v[212:213]")
e("s_cmp_eq_u32 s41, 0"); e("s_cbranch_scc0 A_e1")
for i in range(8): e(f"ds_write_b128 v10, {vr(OA+32+4*i,4)} offset:{1024*i}")
e("s_branch A_e2"); e("A_e1:")
for i in range(8): e(f"ds_write_b128 v10, {vr(OA+4*i,4)} offset:{1024*i}")
for i in range(32): e(f"v_mov_b32 v{OA+i}, v{OA+32+i}")
e("A_e2:")
e("s_waitcnt lgkmcnt(0)"); e("s_barrier")
e("ds_read_b64 v[214:215], v13")
for i in range(8): e(f"ds_read_b128 {vr(KF+4*i,4)}, v11 offset:{1024*i}")
e("s_waitcnt lgkmcnt(0)")
e("v_max_f32 v14, v212, v214")
e("v_sub_f32 v212, v212, v14"); e("v_sub_f32 v214, v214, v14")
e("v_mul_f32 v212, s60, v212"); e("v_mul_f32 v214, s60, v214")
e("v_exp_f32 v212, v212"); e("v_exp_f32 v214, v214"); e("s_nop 0")
e("v_mul_f32 v14, v212, v213"); e("v_fma_f32 v14, v214, v215, v14")
e("v_rcp_f32 v14, v14"); e("s_nop 0")
e("v_mul_f32 v212, v212, v14"); e("v_mul_f32 v214, v214, v14")
for i in range(32):
    e(f"v_mul_f32 v{OA+i}, v{OA+i}, v212"); e(f"v_fma_f32 v{OA+i}, v{KF+i}, v214, v{OA+i}")
for i in range(16): e(f"v_cvt_pk_bf16_f32 v{SA+i}, v{OA+2*i}, v{OA+2*i+1}")
e("s_lshl_b32 s54, s44, 2"); e("s_add_u32 s54, s54, s42"); e("s_lshl_b32 s54, s54, 18")
e("s_lshl_b32 s55, s45, 13"); e("s_add_u32 s54, s54, s55")
e("s_lshl_b32 s55, s41, 12"); e("s_add_u32 s54, s54, s55")
e("v_lshlrev_b32 v10, 4, v8"); e("v_lshl_add_u32 v10, v9, 3, v10")
for i in range(8):
    e(f"buffer_store_dwordx2 {vr(SA+2*i,2)}, v10, s[32:35], s54 offen offset:{i*512}")
e("A_end:"); e("s_endpgm")
L.append(desc("attn_kernel",256))

e(".globl oproj_kernel\n.p2align 8\n.type oproj_kernel,@function\noproj_kernel:")
e("s_cmp_ge_u32 s2, 256"); e("s_cbranch_scc1 B_end")
e("s_load_dwordx4 s[4:7], s[0:1], 32")
e("s_load_dwordx2 s[12:13], s[0:1], 56")
e("s_waitcnt lgkmcnt(0)")
srd(16,4,4194304); srd(20,6,1048576); srd(24,12,8388608)
e("v_and_b32 v1, 63, v0"); e("v_lshrrev_b32 v2, 6, v0"); e("s_nop 0")
e("v_readfirstlane_b32 s40, v2"); e("s_nop 3")
e("s_and_b32 s41, s2, 15")
e("s_lshr_b32 s42, s2, 4")
e("v_lshrrev_b32 v3, 2, v1"); e("v_and_b32 v4, 3, v1"); e("v_lshlrev_b32 v3, 10, v3"); e("v_lshl_add_u32 v200, v4, 4, v3")
e("s_lshl_b32 s43, s40, 20"); e("s_lshl_b32 s44, s41, 6"); e("s_add_u32 s43, s43, s44")
e("s_lshl_b32 s45, s40, 15")
e("v_and_b32 v8, 31, v1"); e("v_lshrrev_b32 v9, 5, v1")
e("s_lshl_b32 s46, s42, 19"); e("s_lshl_b32 s47, s40, 16"); e("s_add_u32 s46, s46, s47")
e("v_lshlrev_b32 v201, 4, v1"); e("v_add_u32 v201, s46, v201"); e("v_add_u32 v202, 0x40000, v201")
e("v_and_b32 v11, 3, v1"); e("v_bfe_u32 v12, v1, 2, 2"); e("v_bfe_u32 v13, v1, 4, 1")
e("v_lshl_add_u32 v12, v9, 3, v12"); e("v_lshlrev_b32 v12, 6, v12"); e("v_lshl_add_u32 v12, v13, 5, v12")
e("v_lshl_add_u32 v12, v11, 3, v12"); e("v_add_u32 v203, s45, v12")
for i in range(32): e(f"v_mov_b32 v{160+i}, 0")
def issue(r):
    for i in range(8):
        e(f"s_add_u32 s50, s45, {(r%2)*8192+i*1024}"); e(f"s_add_u32 s51, s43, {(r*128+i*16)*1024}")
        e("s_mov_b32 m0, s50"); e("s_nop 0")
        e("buffer_load_dwordx4 v200, s[16:19], s51 offen lds")
    for t in range(8):
        o=16+(r%2)*64+8*t
        e(f"s_mov_b32 s51, {(r*8+t)*1024}")
        e(f"buffer_load_dwordx4 {vr(o,4)}, v201, s[24:27], s51 offen")
        e(f"buffer_load_dwordx4 {vr(o+4,4)}, v202, s[24:27], s51 offen")
issue(0)
for r in range(8):
    if r<7:
        issue(r+1); e("s_waitcnt vmcnt(24)")
    else: e("s_waitcnt vmcnt(0)")
    for t in range(8):
        f=208+(t%4)*4; o=16+(r%2)*64+8*t
        def rd(n):
            ff=208+(n%4)*4
            e(f"ds_read_b64_tr_b16 {vr(ff,2)}, v203 offset:{(r%2)*8192+n*1024}")
            e(f"ds_read_b64_tr_b16 {vr(ff+2,2)}, v203 offset:{(r%2)*8192+n*1024+256}")
        if t==0:
            rd(0); rd(1)
        if t+2<8: rd(t+2)
        e(f"s_waitcnt lgkmcnt({min(4,2*(7-t))})")
        e(f"v_mfma_f32_32x32x16_bf16 v[160:175], {vr(f,4)}, {vr(o,4)}, v[160:175]")
        e(f"v_mfma_f32_32x32x16_bf16 v[176:191], {vr(f,4)}, {vr(o+4,4)}, v[176:191]")
e("s_nop 15"); e("s_barrier")
e("v_lshlrev_b32 v10, 4, v1"); e("s_lshl_b32 s50, s40, 13"); e("v_add_u32 v10, s50, v10")
for i in range(8): e(f"ds_write_b128 v10, {vr(160+4*i,4)} offset:{1024*i}")
e("s_waitcnt lgkmcnt(0)"); e("s_barrier")
e("v_lshlrev_b32 v10, 4, v1"); e("s_lshl_b32 s50, s40, 11"); e("v_add_u32 v10, s50, v10")
for w in range(4):
    for i in range(2): e(f"ds_read_b128 {vr(16+8*w+4*i,4)}, v10 offset:{w*8192+i*1024}")
e("s_waitcnt lgkmcnt(0)")
for w in range(1,4):
    for i in range(8): e(f"v_add_f32 v{16+i}, v{16+i}, v{16+8*w+i}")
for i in range(4): e(f"v_cvt_pk_bf16_f32 v{60+i}, v{16+2*i}, v{17+2*i}")
e("s_lshr_b32 s50, s40, 1"); e("s_lshl_b32 s50, s50, 5"); e("s_lshl_b32 s51, s42, 6"); e("s_add_u32 s50, s50, s51")
e("v_add_u32 v10, s50, v8"); e("v_lshlrev_b32 v10, 10, v10"); e("v_lshl_add_u32 v10, v9, 3, v10")
e("s_and_b32 s50, s40, 1"); e("s_lshl_b32 s50, s50, 5"); e("s_lshl_b32 s51, s41, 6"); e("s_add_u32 s50, s50, s51")
e("buffer_store_dwordx2 v[60:61], v10, s[20:23], s50 offen")
e("buffer_store_dwordx2 v[62:63], v10, s[20:23], s50 offen offset:16")
e("B_end:"); e("s_endpgm")
L.append(desc("oproj_kernel",256))
open(OUT,"w").write(HDR+"\n".join(L)+"\n")
```

```python
import math,os,sys
MODE=os.environ.get("MODE","")
OUT=os.environ.get("OUT","standalone__gqa_block_cached__near_ridge.s")
L=[]
def e(s): L.append(s)
def vr(a,n): return f"v[{a}:{a+n-1}]"
HDR='''; @launch kernel=attn_kernel grid=(256,1,1) block=(512,1,1) lds=163840
; @launch kernel=oproj_kernel grid=(256,1,1) block=(256,1,1) lds=131072
.amdgcn_target "amdgcn-amd-amdhsa--gfx950"
.text
'''
def srd(d,p,n):
    e(f"s_mov_b32 s{d}, s{p}"); e(f"s_mov_b32 s{d+1}, s{p+1}")
    e(f"s_mov_b32 s{d+2}, {n}"); e(f"s_mov_b32 s{d+3}, 0x00020000")
def desc(name,nv):
    return f'''.section .rodata,"a"
.p2align 6
.amdhsa_kernel {name}
  .amdhsa_next_free_vgpr {nv}
  .amdhsa_next_free_sgpr 102
  .amdhsa_accum_offset {min(256,(nv+3)//4*4)}
  .amdhsa_group_segment_fixed_size 0
  .amdhsa_kernarg_size 64
  .amdhsa_user_sgpr_count 2
  .amdhsa_user_sgpr_kernarg_segment_ptr 1
  .amdhsa_system_sgpr_workgroup_id_x 1
.end_amdhsa_kernel
.text
'''
QF,OA,SA,KF,VF,PP=16,48,112,128,160,192
e(".globl attn_kernel\n.p2align 8\n.type attn_kernel,@function\nattn_kernel:")
e("s_cmp_ge_u32 s2, 256"); e("s_cbranch_scc1 A_end")
e("s_load_dwordx8 s[4:11], s[0:1], 0")
e("s_load_dwordx2 s[12:13], s[0:1], 56")
e("s_waitcnt lgkmcnt(0)")
srd(16,4,1048576); srd(20,6,134217728); srd(24,8,134217728); srd(28,10,4194304); srd(32,12,8388608)
e("v_and_b32 v1, 63, v0")
e("v_lshrrev_b32 v2, 6, v0")
e("s_nop 0"); e("v_readfirstlane_b32 s40, v2")
e("s_nop 3")
e("s_lshr_b32 s41, s40, 2")
e("s_and_b32 s42, s40, 3")
e("s_lshl_b32 s43, s2, 19")
e("s_lshr_b32 s44, s2, 5")
e("s_and_b32 s45, s2, 31")
e("v_lshrrev_b32 v3, 4, v1")
e("v_and_b32 v4, 15, v1")
e("s_lshl_b32 s46, s40, 2")
e("v_add_u32 v5, s46, v3")
e("v_and_b32 v6, 15, v5"); e("v_xor_b32 v6, v6, v4")
e("v_lshlrev_b32 v7, 8, v5"); e("v_lshl_add_u32 v200, v6, 4, v7")
e("v_lshlrev_b32 v6, 2, v3"); e("v_xor_b32 v6, v6, v4")
e("v_lshl_add_u32 v201, v6, 4, v7")
e("v_lshlrev_b32 v7, 13, v5"); e("v_lshl_add_u32 v202, v6, 4, v7")
if MODE=="dmans":
    e("v_lshlrev_b32 v200, 4, v1"); e("s_lshl_b32 s46, s40, 10"); e("v_add_u32 v200, s46, v200"); e("v_mov_b32 v201, v200")
e("s_lshl_b32 s47, s40, 10")
e("s_mul_i32 s62, s2, 5")
def dma_unit(sunit_off, slot_s):
    for part,(sr,vo) in enumerate(((20,200),(24,201))):
        for i in range(2):
            e(f"s_add_u32 s50, {slot_s}, s47")
            e(f"s_add_u32 s50, s50, {part*16384+i*8192}")
            e(f"s_add_u32 s51, {sunit_off}, {i*8192}")
            e("s_mov_b32 m0, s50"); e("s_nop 0")
            e(f"buffer_load_dwordx4 v{vo}, s[{sr}:{sr+3}], s51 offen"+" nt"+" lds")
e("v_and_b32 v8, 31, v1"); e("v_lshrrev_b32 v9, 5, v1")
e("s_lshl_b32 s54, s44, 7"); e("s_lshl_b32 s55, s42, 5"); e("s_add_u32 s54, s54, s55")
e("v_add_u32 v10, s54, v8"); e("v_lshlrev_b32 v10, 10, v10"); e("v_lshl_add_u32 v203, v9, 4, v10")
e("v_and_b32 v11, 3, v1")
e("v_bfe_u32 v12, v1, 2, 2")
e("v_bfe_u32 v13, v1, 4, 1")
e("v_and_b32 v14, 1, v11"); e("v_lshrrev_b32 v15, 1, v11")
e("v_lshl_add_u32 v204, v13, 1, v14"); e("v_lshlrev_b32 v205, 2, v12"); e("v_xor_b32 v204, v204, v205")
e("v_lshlrev_b32 v204, 4, v204"); e("v_lshl_add_u32 v204, v15, 3, v204")
e("v_lshl_add_u32 v205, v9, 3, v12"); e("v_lshl_add_u32 v204, v205, 8, v204")
e("s_lshl_b32 s55, s41, 7")
e("v_xor_b32 v204, s55, v204")
e("v_add_u32 v204, 0x18000, v204")
e("v_xor_b32 v205, 64, v204")
e("v_lshl_add_u32 v206, v13, 1, v15"); e("v_lshlrev_b32 v207, 2, v12"); e("v_xor_b32 v206, v206, v207")
e("v_lshlrev_b32 v206, 4, v206"); e("v_lshl_add_u32 v206, v14, 3, v206")
e("v_lshl_add_u32 v207, v9, 2, v12"); e("s_lshl_b32 s55, s41, 5"); e("v_add_u32 v207, s55, v207")
e("v_lshl_add_u32 v206, v207, 8, v206"); e("v_add_u32 v206, 16384, v206")
e("v_add_u32 v207, s55, v8"); e("v_and_b32 v208, 15, v207"); e("v_xor_b32 v208, v208, v9")
e("v_lshlrev_b32 v208, 4, v208"); e("v_lshl_add_u32 v207, v207, 8, v208")
def kvpre():
    for u in range(3):
        e(f"s_add_u32 s52, s62, {u}"); e("s_and_b32 s52, s52, 31"); e("s_lshl_b32 s52, s52, 14")
        e("s_add_u32 s52, s52, s43"); e(f"s_mov_b32 s53, {u*32768}")
        dma_unit("s52","s53")
AC=208
for i in range(32): e(f"v_mov_b32 v{AC+i}, 0")
for half in range(2):
    if half: e("s_barrier")
    for i in range(8):
        e(f"s_add_u32 s50, s47, {0x18000+i*8192}")
        e(f"s_lshl_b32 s51, s45, 8"); e(f"s_add_u32 s51, s51, {(half*256+i*32)*8192}")
        e("s_mov_b32 m0, s50"); e("s_nop 0")
        e("buffer_load_dwordx4 v202, s[28:31], s51 offen lds")
    for s in range(16):
        e(f"buffer_load_dwordx4 {vr(OA+4*s,4)}, v203, s[16:19], 0 offen offset:{half*512+s*32}")
    if half==0:
        kvpre(); e("s_waitcnt vmcnt(12)")
    else: e("s_waitcnt vmcnt(0)")
    e("s_barrier")
    for s in range(16):
        for d,ar in enumerate((204,205)):
            f=KF+((s*2+d)%8)*4
            def rd(n):
                ss,dd=n//2,n%2; ff=KF+(n%8)*4
                e(f"ds_read_b64_tr_b16 {vr(ff,2)}, v{204+dd} offset:{ss*4096}")
                e(f"ds_read_b64_tr_b16 {vr(ff+2,2)}, v{204+dd} offset:{ss*4096+1024}")
            n=s*2+d
            if n==0:
                for k in range(4): rd(k)
            if n+4<32: rd(n+4)
            e(f"s_waitcnt lgkmcnt({min(8,2*(31-n))})")
            e(f"v_mfma_f32_32x32x16_bf16 {vr(AC+16*d,16)}, {vr(f,4)}, {vr(OA+4*s,4)}, {vr(AC+16*d,16)}")
e("s_nop 15"); e("s_barrier")
for i in range(16): e(f"v_cvt_pk_bf16_f32 v{KF+i}, v{AC+2*i}, v{AC+2*i+1}")
e("v_lshlrev_b32 v10, 6, v0"); e("v_add_u32 v10, 0x18000, v10")
e("v_xor_b32 v11, 0x4000, v10")
for i in range(4): e(f"ds_write_b128 v10, {vr(KF+4*i,4)} offset:{16*i}")
e("s_waitcnt lgkmcnt(0)"); e("s_barrier")
for i in range(4): e(f"ds_read_b128 {vr(VF+4*i,4)}, v11 offset:{16*i}")
e("s_waitcnt lgkmcnt(0)")
e("s_cmp_eq_u32 s41, 0"); e("s_cbranch_scc0 A_g1")
for i in range(16): e(f"v_mov_b32 v{QF+i}, v{KF+i}"); e(f"v_mov_b32 v{QF+16+i}, v{VF+i}")
e("s_branch A_q"); e("A_g1:")
for i in range(16): e(f"v_mov_b32 v{QF+16+i}, v{KF+i}"); e(f"v_mov_b32 v{QF+i}, v{VF+i}")
e("A_q:")
e("s_barrier")
for i in range(64): e(f"v_mov_b32 v{OA+i}, 0")
e("v_mov_b32 v212, 0xff800000")
e("v_mov_b32 v213, 0")
c=math.log2(math.e)/math.sqrt(128)
import struct
cb=struct.unpack('<I',struct.pack('<f',c))[0]
e(f"s_mov_b32 s60, 0x{cb:08x}")
e("s_mov_b32 s61, 0")
e("A_loop:")
e("s_cmp_ge_u32 s61, 29"); e("s_cbranch_scc1 A_w0")
e("s_waitcnt vmcnt(8)"); e("s_branch A_w1")
e("A_w0:"); e("s_waitcnt vmcnt(0)"); e("A_w1:")
e("s_barrier")
e("s_cmp_ge_u32 s61, 29"); e("s_cbranch_scc1 A_nodma")
if MODE in("comp","none"): e("s_branch A_nodma")
e("s_add_u32 s52, s61, 3"); e("s_and_b32 s53, s52, 3"); e("s_lshl_b32 s53, s53, 15")
e("s_add_u32 s52, s52, s62"); e("s_and_b32 s52, s52, 31")
e("s_lshl_b32 s52, s52, 14"); e("s_add_u32 s52, s52, s43")
dma_unit("s52","s53")
e("A_nodma:")
if MODE in("dma","none","dmans","dmant"): e("s_branch A_next")
e("s_and_b32 s53, s61, 3"); e("s_lshl_b32 s53, s53, 15")
e("v_add_u32 v10, s53, v207"); e("v_add_u32 v11, s53, v206")
for s in range(8):
    e(f"v_xor_b32 v12, {s*32}, v10")
    e(f"ds_read_b128 {vr(KF+4*s,4)}, v12")
for d in range(4):
    e(f"v_xor_b32 v{216+d}, {d*64}, v11")
for s in range(8):
    e(f"s_waitcnt lgkmcnt({7-s})")
    src = "0" if s==0 else vr(SA,16)
    e(f"v_mfma_f32_32x32x16_bf16 {vr(SA,16)}, {vr(KF+4*s,4)}, {vr(QF+4*s,4)}, {src}")
for d in range(4):
    for ks in range(2):
        f=VF+(d*2+ks)*4
        e(f"ds_read_b64_tr_b16 {vr(f,2)}, v{216+d} offset:{ks*4096}")
        e(f"ds_read_b64_tr_b16 {vr(f+2,2)}, v{216+d} offset:{ks*4096+2048}")
e("s_nop 7")
e(f"v_max3_f32 v14, v{SA}, v{SA+1}, v212")
for i in range(2,16,2): e(f"v_max3_f32 v14, v{SA+i}, v{SA+i+1}, v14")
e("v_mov_b32 v15, v14"); e("s_nop 1")
e("v_permlane32_swap_b32 v14, v15"); e("s_nop 1")
e("v_max_f32 v14, v14, v15")
e("v_sub_f32 v15, v212, v14"); e("v_mul_f32 v15, s60, v15"); e("v_exp_f32 v15, v15")
e("v_mov_b32 v212, v14")
e("v_mul_f32 v14, s60, v14")
for i in range(16):
    e(f"v_fma_f32 v{SA+i}, v{SA+i}, s60, -v14")
for i in range(16): e(f"v_exp_f32 v{SA+i}, v{SA+i}")
e("v_mul_f32 v213, v213, v15")
for i in range(16): e(f"v_add_f32 v213, v213, v{SA+i}")
for i in range(8): e(f"v_cvt_pk_bf16_f32 v{PP+i}, v{SA+2*i}, v{SA+2*i+1}")
e("v_cmp_neq_f32 vcc, 1.0, v15"); e("s_nop 1"); e("s_cbranch_vccz A_nors")
for i in range(64): e(f"v_mul_f32 v{OA+i}, v{OA+i}, v15")
e("A_nors:")
e("s_waitcnt lgkmcnt(0)"); e("s_nop 1")
for d in range(4):
    for ks in range(2):
        f=VF+(d*2+ks)*4
        e(f"v_mfma_f32_32x32x16_bf16 {vr(OA+16*d,16)}, {vr(f,4)}, {vr(PP+4*ks,4)}, {vr(OA+16*d,16)}")
e("A_next:")
e("s_add_u32 s61, s61, 1"); e("s_cmp_lt_u32 s61, 32"); e("s_cbranch_scc1 A_loop")
e("s_nop 15")
e("v_mov_b32 v15, v213"); e("s_nop 1"); e("v_permlane32_swap_b32 v213, v15"); e("s_nop 1")
e("v_add_f32 v213, v213, v15")
e("s_barrier")
e("v_lshlrev_b32 v10, 4, v1"); e("s_lshl_b32 s50, s40, 13"); e("v_add_u32 v10, s50, v10")
e("v_xor_b32 v11, 0x8000, v10")
e("v_lshlrev_b32 v12, 3, v0"); e("v_add_u32 v12, 0x10000, v12"); e("v_xor_b32 v13, 0x800, v12")
e("ds_write_b64 v12, v[212:213]")
e("s_cmp_eq_u32 s41, 0"); e("s_cbranch_scc0 A_e1")
for i in range(8): e(f"ds_write_b128 v10, {vr(OA+32+4*i,4)} offset:{1024*i}")
e("s_branch A_e2"); e("A_e1:")
for i in range(8): e(f"ds_write_b128 v10, {vr(OA+4*i,4)} offset:{1024*i}")
for i in range(32): e(f"v_mov_b32 v{OA+i}, v{OA+32+i}")
e("A_e2:")
e("s_waitcnt lgkmcnt(0)"); e("s_barrier")
e("ds_read_b64 v[214:215], v13")
for i in range(8): e(f"ds_read_b128 {vr(KF+4*i,4)}, v11 offset:{1024*i}")
e("s_waitcnt lgkmcnt(0)")
e("v_max_f32 v14, v212, v214")
e("v_sub_f32 v212, v212, v14"); e("v_sub_f32 v214, v214, v14")
e("v_mul_f32 v212, s60, v212"); e("v_mul_f32 v214, s60, v214")
e("v_exp_f32 v212, v212"); e("v_exp_f32 v214, v214"); e("s_nop 0")
e("v_mul_f32 v14, v212, v213"); e("v_fma_f32 v14, v214, v215, v14")
e("v_rcp_f32 v14, v14"); e("s_nop 0")
e("v_mul_f32 v212, v212, v14"); e("v_mul_f32 v214, v214, v14")
for i in range(32):
    e(f"v_mul_f32 v{OA+i}, v{OA+i}, v212"); e(f"v_fma_f32 v{OA+i}, v{KF+i}, v214, v{OA+i}")
for i in range(16): e(f"v_cvt_pk_bf16_f32 v{SA+i}, v{OA+2*i}, v{OA+2*i+1}")
e("s_lshl_b32 s54, s44, 2"); e("s_add_u32 s54, s54, s42"); e("s_lshl_b32 s54, s54, 18")
e("s_lshl_b32 s55, s45, 13"); e("s_add_u32 s54, s54, s55")
e("s_lshl_b32 s55, s41, 12"); e("s_add_u32 s54, s54, s55")
e("v_lshlrev_b32 v10, 4, v8"); e("v_lshl_add_u32 v10, v9, 3, v10")
for i in range(8):
    e(f"buffer_store_dwordx2 {vr(SA+2*i,2)}, v10, s[32:35], s54 offen offset:{i*512}")
e("A_end:"); e("s_endpgm")
L.append(desc("attn_kernel",256))

e(".globl oproj_kernel\n.p2align 8\n.type oproj_kernel,@function\noproj_kernel:")
e("s_cmp_ge_u32 s2, 256"); e("s_cbranch_scc1 B_end")
e("s_load_dwordx4 s[4:7], s[0:1], 32")
e("s_load_dwordx2 s[12:13], s[0:1], 56")
e("s_waitcnt lgkmcnt(0)")
srd(16,4,4194304); srd(20,6,1048576); srd(24,12,8388608)
e("v_and_b32 v1, 63, v0"); e("v_lshrrev_b32 v2, 6, v0"); e("s_nop 0")
e("v_readfirstlane_b32 s40, v2"); e("s_nop 3")
e("s_and_b32 s41, s2, 15")
e("s_lshr_b32 s42, s2, 4")
e("v_lshrrev_b32 v3, 2, v1"); e("v_and_b32 v4, 3, v1"); e("v_lshlrev_b32 v3, 10, v3"); e("v_lshl_add_u32 v200, v4, 4, v3")
e("s_lshl_b32 s43, s40, 20"); e("s_lshl_b32 s44, s41, 6"); e("s_add_u32 s43, s43, s44")
e("s_lshl_b32 s45, s40, 15")
e("v_and_b32 v8, 31, v1"); e("v_lshrrev_b32 v9, 5, v1")
e("s_lshl_b32 s46, s42, 19"); e("s_lshl_b32 s47, s40, 16"); e("s_add_u32 s46, s46, s47")
e("v_lshlrev_b32 v201, 4, v1"); e("v_add_u32 v201, s46, v201"); e("v_add_u32 v202, 0x40000, v201")
e("v_and_b32 v11, 3, v1"); e("v_bfe_u32 v12, v1, 2, 2"); e("v_bfe_u32 v13, v1, 4, 1")
e("v_lshl_add_u32 v12, v9, 3, v12"); e("v_lshlrev_b32 v12, 6, v12"); e("v_lshl_add_u32 v12, v13, 5, v12")
e("v_lshl_add_u32 v12, v11, 3, v12"); e("v_add_u32 v203, s45, v12")
for i in range(32): e(f"v_mov_b32 v{160+i}, 0")
def issue(r):
    for i in range(8):
        e(f"s_add_u32 s50, s45, {(r%2)*8192+i*1024}"); e(f"s_add_u32 s51, s43, {(r*128+i*16)*1024}")
        e("s_mov_b32 m0, s50"); e("s_nop 0")
        e("buffer_load_dwordx4 v200, s[16:19], s51 offen lds")
    for t in range(8):
        o=16+(r%2)*64+8*t
        e(f"s_mov_b32 s51, {(r*8+t)*1024}")
        e(f"buffer_load_dwordx4 {vr(o,4)}, v201, s[24:27], s51 offen")
        e(f"buffer_load_dwordx4 {vr(o+4,4)}, v202, s[24:27], s51 offen")
issue(0)
for r in range(8):
    if r<7:
        issue(r+1); e("s_waitcnt vmcnt(24)")
    else: e("s_waitcnt vmcnt(0)")
    for t in range(8):
        f=208+(t%4)*4; o=16+(r%2)*64+8*t
        def rd(n):
            ff=208+(n%4)*4
            e(f"ds_read_b64_tr_b16 {vr(ff,2)}, v203 offset:{(r%2)*8192+n*1024}")
            e(f"ds_read_b64_tr_b16 {vr(ff+2,2)}, v203 offset:{(r%2)*8192+n*1024+256}")
        if t==0:
            rd(0); rd(1)
        if t+2<8: rd(t+2)
        e(f"s_waitcnt lgkmcnt({min(4,2*(7-t))})")
        e(f"v_mfma_f32_32x32x16_bf16 v[160:175], {vr(f,4)}, {vr(o,4)}, v[160:175]")
        e(f"v_mfma_f32_32x32x16_bf16 v[176:191], {vr(f,4)}, {vr(o+4,4)}, v[176:191]")
e("s_nop 15"); e("s_barrier")
e("v_lshlrev_b32 v10, 4, v1"); e("s_lshl_b32 s50, s40, 13"); e("v_add_u32 v10, s50, v10")
for i in range(8): e(f"ds_write_b128 v10, {vr(160+4*i,4)} offset:{1024*i}")
e("s_waitcnt lgkmcnt(0)"); e("s_barrier")
e("v_lshlrev_b32 v10, 4, v1"); e("s_lshl_b32 s50, s40, 11"); e("v_add_u32 v10, s50, v10")
for w in range(4):
    for i in range(2): e(f"ds_read_b128 {vr(16+8*w+4*i,4)}, v10 offset:{w*8192+i*1024}")
e("s_waitcnt lgkmcnt(0)")
for w in range(1,4):
    for i in range(8): e(f"v_add_f32 v{16+i}, v{16+i}, v{16+8*w+i}")
for i in range(4): e(f"v_cvt_pk_bf16_f32 v{60+i}, v{16+2*i}, v{17+2*i}")
e("s_lshr_b32 s50, s40, 1"); e("s_lshl_b32 s50, s50, 5"); e("s_lshl_b32 s51, s42, 6"); e("s_add_u32 s50, s50, s51")
e("v_add_u32 v10, s50, v8"); e("v_lshlrev_b32 v10, 10, v10"); e("v_lshl_add_u32 v10, v9, 3, v10")
e("s_and_b32 s50, s40, 1"); e("s_lshl_b32 s50, s50, 5"); e("s_lshl_b32 s51, s41, 6"); e("s_add_u32 s50, s50, s51")
e("buffer_store_dwordx2 v[60:61], v10, s[20:23], s50 offen")
e("buffer_store_dwordx2 v[62:63], v10, s[20:23], s50 offen offset:16")
e("B_end:"); e("s_endpgm")
L.append(desc("oproj_kernel",256))
open(OUT,"w").write(HDR+"\n".join(L)+"\n")
```
